```python
import torch

def _softmax(x, axis=-1):
    return torch.softmax(x, dim=axis)
def _gelu(x):
    return torch.nn.functional.gelu(x, approximate="tanh")
def _silu(x):
    return torch.nn.functional.silu(x)
def _sigmoid(x):
    return torch.sigmoid(x)
def _layernorm(x, axis=-1, eps=1e-5):
    m = x.mean(dim=axis, keepdim=True)
    v = x.var(dim=axis, keepdim=True, unbiased=False)
    return (x - m) / torch.sqrt(v + eps)
def _scatter_add(tgt, idx, src, axis=0):
    return tgt.clone().index_add_(axis, idx, src)
def _segment_sum(src, seg, n):
    out = torch.zeros((n,) + src.shape[1:], dtype=src.dtype)
    return out.index_add_(0, seg, src)
def _pad(x, pw):
    flat = tuple(v for pair in reversed(pw) for v in pair)
    return torch.nn.functional.pad(x, flat)

kernel_name = 'sequential_preLN__compressed_kv_cla__dense_activation_gelu__prompt'

def setup_inputs():

    _w = (lambda a: (lambda t: t.to(torch.bfloat16) if t.is_floating_point() else t)(torch.as_tensor(a)))
    def _A_setup():
        B, H, Sq, Sk, D, M = 1, 32, 2048, 2048, 128, 512
        Dc = 4 * D
        return {
            "x": _w((lambda *s: torch.randn(*s, dtype=torch.bfloat16) * 0.05)(B, Sq, M)),
            "c_kv": _w((lambda *s: torch.randn(*s, dtype=torch.bfloat16) * 0.2)(B, Sk, Dc)),
            "w_q": _w((lambda *s: torch.randn(*s, dtype=torch.bfloat16) * 6.4)(M, H, D) * (M ** -0.5)),
            "w_uk": _w((lambda *s: torch.randn(*s, dtype=torch.bfloat16) * 12.8)(Dc, H, D) * (Dc ** -0.5)),
            "w_uv": _w((lambda *s: torch.randn(*s, dtype=torch.bfloat16) * 0.2)(Dc, H, D) * (Dc ** -0.5)),
            "w_o": _w((lambda *s: torch.randn(*s, dtype=torch.bfloat16) * 0.2)(H, D, M) * ((H * D) ** -0.5)),
        }
    _A_in = _A_setup()

    def _B_setup():
        B, S, D, F = 1, 2048, 512, 1376
        return {
            "x": _w((lambda *s: torch.randn(*s, dtype=torch.bfloat16) * 0.05)(B, S, D)),
            "w1": _w((lambda *s: torch.randn(*s, dtype=torch.bfloat16) * 0.4)(D, F) * (D ** -0.5)),
            "b1": _w((lambda *s: torch.randn(*s, dtype=torch.bfloat16) * 12.8)(F) * 0.01),
            "w2": _w((lambda *s: torch.randn(*s, dtype=torch.bfloat16) * 0.2)(F, D) * (F ** -0.5)),
            "b2": _w((lambda *s: torch.randn(*s, dtype=torch.bfloat16) * 1.6)(D) * 0.01),
        }
    _B_in = _B_setup()

    return {
        "A_x": _A_in["x"],
        "A_c_kv": _A_in["c_kv"],
        "A_w_q": _A_in["w_q"],
        "A_w_uk": _A_in["w_uk"],
        "A_w_uv": _A_in["w_uv"],
        "A_w_o": _A_in["w_o"],
        "B_x": _B_in["x"],
        "B_w1": _B_in["w1"],
        "B_b1": _B_in["b1"],
        "B_w2": _B_in["w2"],
        "B_b2": _B_in["b2"],
    }

def reference(A_x, A_c_kv, A_w_q, A_w_uk, A_w_uv, A_w_o, B_x, B_w1, B_b1, B_w2, B_b2):
    def _A_ref(x, c_kv, w_q, w_uk, w_uv, w_o):
        B, Sq, M = x.shape[0], x.shape[1], x.shape[2]
        Sk = c_kv.shape[1]
        H, D = w_q.shape[1], w_q.shape[2]
        q = torch.einsum("bqm,mhd->bhqd", x, w_q)
        k = torch.einsum("bkc,chd->bhkd", c_kv, w_uk)
        v = torch.einsum("bkc,chd->bhkd", c_kv, w_uv)
        scores = torch.einsum("bhqd,bhkd->bhqk", q, k) * (D ** -0.5)
        off = Sk - Sq
        qi = torch.arange(Sq)[:, None]
        kj = torch.arange(Sk)[None, :]
        cmask = kj <= (qi + off)
        scores = torch.where(cmask[None, None], scores, -1e9)
        p = _softmax(scores, axis=-1)
        ctx = torch.einsum("bhqk,bhkd->bhqd", p, v)
        return torch.einsum("bhqd,hdm->bqm", ctx, w_o)

    def _B_ref(x, w1, b1, w2, b2):
        h = torch.einsum("bsd,df->bsf", x, w1) + b1
        h = _gelu(h)
        return torch.einsum("bsf,fd->bsd", h, w2) + b2

    x = A_x
    h = x + _A_ref(_layernorm(x, axis=-1), A_c_kv, A_w_q, A_w_uk, A_w_uv, A_w_o)
    h2 = h + _B_ref(_layernorm(h, axis=-1), B_w1, B_b1, B_w2, B_b2)
    return h2
```

```python
import sys

NAME = "sequential_preLN__compressed_kv_cla__dense_activation_gelu__prompt"
OUT = "cdna_kernels/" + NAME + ".s"

WS_XLN, WS_Q, WS_K, WS_V, WS_CTX, WS_PART, WS_H, WS_HLN, WS_H1 = (
    0, 0x200000, 0x1200000, 0x2200000, 0x3200000, 0x4200000, 0x5200000, 0x5400000, 0x5600000)
H1_PITCH = 1408

A_X, A_CKV, A_WQ, A_WUK, A_WUV, A_WO, B_X, B_W1, B_B1, B_W2, B_B2, D_OUT, D_DBG, D_WS = range(14)


class Asm:
    def __init__(self):
        self.l = []

    def __call__(self, s):
        for line in s.strip("\n").split("\n"):
            self.l.append("  " + line.strip())

    def label(self, s):
        self.l.append(s + ":")

    def raw(self, s):
        self.l.append(s)

    def text(self):
        return "\n".join(self.l) + "\n"


def kernel_begin(k, name):
    k.raw(".text")
    k.raw(f".globl {name}")
    k.raw(".p2align 8")
    k.raw(f".type {name},@function")
    k.label(name)


def kernel_end(k, name, vgpr, sgpr=96, agpr=0):
    k("s_endpgm")
    acc = (vgpr + 3) // 4 * 4
    k.raw('.section .rodata,"a"')
    k.raw(".p2align 6")
    k.raw(f".amdhsa_kernel {name}")
    k.raw(f"  .amdhsa_next_free_vgpr {acc + agpr}")
    k.raw(f"  .amdhsa_next_free_sgpr {sgpr}")
    k.raw(f"  .amdhsa_accum_offset {acc}")
    k.raw("  .amdhsa_group_segment_fixed_size 0")
    k.raw("  .amdhsa_kernarg_size 112")
    k.raw("  .amdhsa_user_sgpr_count 2")
    k.raw("  .amdhsa_user_sgpr_kernarg_segment_ptr 1")
    k.raw("  .amdhsa_system_sgpr_workgroup_id_x 1")
    k.raw(".end_amdhsa_kernel")


def srd(k, d, lo, hi, nbytes):
    k(f"s_mov_b32 s{d}, s{lo}")
    k(f"s_and_b32 s{d+1}, s{hi}, 0xffff")
    k(f"s_mov_b32 s{d+2}, {nbytes}")
    k(f"s_mov_b32 s{d+3}, 0x00020000")


def wave_allreduce_add(k, v, tmp):
    for off in (0x041F, 0x081F, 0x101F, 0x201F, 0x401F):
        k(f"ds_swizzle_b32 v{tmp}, v{v} offset:{off:#x}")
        k("s_waitcnt lgkmcnt(0)")
        k(f"v_add_f32 v{v}, v{v}, v{tmp}")
    k(f"v_mov_b32 v{tmp}, v{v}")
    k("s_nop 1")
    k(f"v_permlane32_swap_b32 v{tmp}, v{v}")
    k("s_nop 1")
    k(f"v_add_f32 v{v}, v{v}, v{tmp}")


def ln_kernel(k, name, mode):
    kernel_begin(k, name)
    k("s_cmp_ge_u32 s2, 512")
    k("s_cbranch_scc1 L_%s_done" % name)
    k(f"s_load_dwordx2 s[4:5], s[0:1], {A_X*8}")
    k(f"s_load_dwordx2 s[6:7], s[0:1], {D_WS*8}")
    k("v_lshrrev_b32 v1, 6, v0")
    k("v_and_b32 v2, 63, v0")
    k("s_lshl_b32 s3, s2, 2")
    k("v_add_u32 v1, s3, v1")
    k("v_lshlrev_b32 v3, 10, v1")
    k("v_lshl_add_u32 v3, v2, 4, v3")
    k("s_waitcnt lgkmcnt(0)")
    srd(k, 8, 4, 5, 2048 * 1024)
    if mode == 1:
        k(f"s_add_u32 s20, s6, {WS_XLN}")
        k("s_addc_u32 s21, s7, 0")
        srd(k, 12, 20, 21, 2048 * 1024)
    else:
        k(f"s_add_u32 s20, s6, {WS_HLN}")
        k("s_addc_u32 s21, s7, 0")
        srd(k, 12, 20, 21, 2048 * 1024)
        k(f"s_add_u32 s20, s6, {WS_H}")
        k("s_addc_u32 s21, s7, 0")
        srd(k, 16, 20, 21, 2048 * 1024)
        k(f"s_add_u32 s20, s6, {WS_PART}")
        k("s_addc_u32 s21, s7, 0")
        srd(k, 24, 20, 21, 4 * 2048 * 2048)
    k("buffer_load_dwordx4 v[4:7], v3, s[8:11], 0 offen")
    if mode == 2:
        k("v_lshlrev_b32 v8, 11, v1")
        k("v_lshl_add_u32 v8, v2, 5, v8")
        for p in range(4):
            k(f"s_mov_b32 s28, {p * 2048 * 2048}")
            k(f"buffer_load_dwordx4 v[{40+8*p}:{43+8*p}], v8, s[24:27], s28 offen")
            k(f"buffer_load_dwordx4 v[{44+8*p}:{47+8*p}], v8, s[24:27], s28 offen offset:16")
    k("s_waitcnt vmcnt(0)")
    for i in range(4):
        k(f"v_lshlrev_b32 v{10+2*i}, 16, v{4+i}")
        k(f"v_and_b32 v{11+2*i}, 0xffff0000, v{4+i}")
    if mode == 2:
        for i in range(8):
            k(f"v_add_f32 v{40+i}, v{40+i}, v{48+i}")
            k(f"v_add_f32 v{56+i}, v{56+i}, v{64+i}")
        for i in range(8):
            k(f"v_add_f32 v{40+i}, v{40+i}, v{56+i}")
        for i in range(4):
            k(f"v_cvt_pk_bf16_f32 v{48+i}, v{40+2*i}, v{41+2*i}")
        for i in range(4):
            k(f"v_lshlrev_b32 v{40+2*i}, 16, v{48+i}")
            k(f"v_and_b32 v{41+2*i}, 0xffff0000, v{48+i}")
        for i in range(8):
            k(f"v_add_f32 v{10+i}, v{10+i}, v{40+i}")
        for i in range(4):
            k(f"v_cvt_pk_bf16_f32 v{4+i}, v{10+2*i}, v{11+2*i}")
        for i in range(4):
            k(f"v_lshlrev_b32 v{10+2*i}, 16, v{4+i}")
            k(f"v_and_b32 v{11+2*i}, 0xffff0000, v{4+i}")
        k("buffer_store_dwordx4 v[4:7], v3, s[16:19], 0 offen")
    k("v_add_f32 v20, v10, v11")
    for i in range(2, 8):
        k(f"v_add_f32 v20, v20, v{10+i}")
    wave_allreduce_add(k, 20, 21)
    k("v_mul_f32 v20, 0x3b000000, v20")
    for i in range(8):
        k(f"v_sub_f32 v{24+i}, v{10+i}, v20")
    k("v_mul_f32 v22, v24, v24")
    for i in range(1, 8):
        k(f"v_fmac_f32 v22, v{24+i}, v{24+i}")
    wave_allreduce_add(k, 22, 21)
    k("v_mul_f32 v22, 0x3b000000, v22")
    k("v_cvt_pk_bf16_f32 v23, v20, v22")
    k("v_lshlrev_b32 v20, 16, v23")
    k("v_and_b32 v22, 0xffff0000, v23")
    k("v_add_f32 v22, 0x3727c5ac, v22")
    k("v_cvt_pk_bf16_f32 v22, v22, v22")
    k("v_lshlrev_b32 v22, 16, v22")
    k("v_sqrt_f32 v22, v22")
    k("s_nop 1")
    k("v_cvt_pk_bf16_f32 v22, v22, v22")
    k("v_lshlrev_b32 v22, 16, v22")
    k("v_rcp_f32 v23, v22")
    k("s_nop 1")
    for i in range(8):
        k(f"v_sub_f32 v{24+i}, v{10+i}, v20")
    for i in range(4):
        k(f"v_cvt_pk_bf16_f32 v{32+i}, v{24+2*i}, v{25+2*i}")
    for i in range(4):
        k(f"v_lshlrev_b32 v{24+2*i}, 16, v{32+i}")
        k(f"v_and_b32 v{25+2*i}, 0xffff0000, v{32+i}")
    for i in range(8):
        k(f"v_mul_f32 v{32+i}, v{24+i}, v23")
    for i in range(8):
        k(f"v_fma_f32 v{10+i}, -v{32+i}, v22, v{24+i}")
    for i in range(8):
        k(f"v_fmac_f32 v{32+i}, v{10+i}, v23")
    for i in range(4):
        k(f"v_cvt_pk_bf16_f32 v{4+i}, v{32+2*i}, v{33+2*i}")
    k("buffer_store_dwordx4 v[4:7], v3, s[12:15], 0 offen")
    k.label("L_%s_done" % name)
    kernel_end(k, name, 72)


GV = dict(STA=16, STW=32, F0A=48, F0W=56, F1A=64, F1W=72, ACC=80)


def gemm_kernel(k, name, nwg, decode, lda, ldw, nt, epilogue, vgpr=144):
    assert nt % 2 == 0
    kernel_begin(k, name)
    k(f"s_cmp_ge_u32 s2, {nwg}")
    k(f"s_cbranch_scc1 L_{name}_done")
    decode(k)
    k(f"""
    v_lshrrev_b32 v1, 3, v0
    v_and_b32 v2, 7, v0
    v_mul_u32_u24 v3, {lda}, v1
    v_lshl_add_u32 v3, v2, 4, v3
    v_lshrrev_b32 v8, 4, v0
    v_and_b32 v9, 7, v8
    v_xor_b32 v2, v2, v9
    v_lshlrev_b32 v5, 7, v1
    v_lshl_add_u32 v5, v2, 4, v5
    v_and_b32 v2, 15, v0
    v_mul_u32_u24 v4, {ldw}, v8
    v_lshl_add_u32 v4, v2, 4, v4
    v_and_b32 v9, 3, v8
    v_lshlrev_b32 v9, 2, v9
    v_xor_b32 v2, v2, v9
    v_lshlrev_b32 v6, 8, v8
    v_lshl_add_u32 v6, v2, 4, v6
    v_add_u32 v6, 16384, v6
    """)
    k("""
    v_and_b32 v1, 63, v0
    v_lshrrev_b32 v2, 6, v0
    v_lshrrev_b32 v7, 1, v2               ; wm
    v_and_b32 v2, 1, v2                   ; wn
    v_and_b32 v8, 31, v1
    v_lshl_add_u32 v8, v7, 6, v8
    v_lshlrev_b32 v8, 7, v8               ; row*128
    v_lshrrev_b32 v9, 1, v1
    v_and_b32 v9, 7, v9                   ; x = (l>>1)&7
    v_lshrrev_b32 v10, 5, v1              ; h
    """)
    for s in range(4):
        k(f"""
        v_add_u32 v11, {2*s}, v10
        v_xor_b32 v11, v11, v9
        v_lshl_add_u32 v{12+s}, v11, 4, v8
        """)
    k("""
    v_and_b32 v8, 15, v1                  ; c
    v_lshrrev_b32 v9, 2, v8               ; r
    v_and_b32 v8, 3, v8                   ; col4
    v_lshrrev_b32 v7, 4, v1               ; g
    v_lshrrev_b32 v10, 1, v7              ; g>>1
    v_lshlrev_b32 v10, 3, v10             ; 8*(g>>1)
    v_add_u32 v10, v10, v9
    v_lshlrev_b32 v10, 8, v10             ; *256
    v_and_b32 v7, 1, v7                   ; g&1
    v_lshlrev_b32 v7, 1, v7               ; 2*(g&1)
    v_lshrrev_b32 v11, 1, v8              ; col4>>1
    v_add_u32 v7, v7, v11                 ; 2*(g&1) + (col4>>1)
    v_lshl_add_u32 v7, v2, 3, v7
    v_lshlrev_b32 v9, 2, v9               ; r<<2
    v_and_b32 v8, 1, v8
    v_lshlrev_b32 v8, 3, v8               ; (col4&1)*8
    v_add_u32 v10, v10, v8
    v_add_u32 v10, 16384, v10
    v_xor_b32 v11, v7, v9
    v_lshl_add_u32 v1, v11, 4, v10        ; addr i_n=0
    v_add_u32 v7, 4, v7
    v_xor_b32 v11, v7, v9
    v_lshl_add_u32 v2, v11, 4, v10        ; addr i_n=1
    v_mov_b32 v10, v1
    v_mov_b32 v11, v2
    """)
    for i in range(64):
        k(f"v_mov_b32 v{GV['ACC']+i}, 0")
    for j in range(4):
        k(f"s_mov_b32 s{24+j}, {j*32*lda}")
        k(f"s_mov_b32 s{28+j}, {j*16*ldw}")

    def gload():
        for j in range(4):
            k(f"buffer_load_dwordx4 v[{GV['STA']+4*j}:{GV['STA']+4*j+3}], v3, s[4:7], s{24+j} offen")
        for j in range(4):
            k(f"buffer_load_dwordx4 v[{GV['STW']+4*j}:{GV['STW']+4*j+3}], v4, s[8:11], s{28+j} offen")
        for j in range(4):
            k(f"s_add_u32 s{24+j}, s{24+j}, 128")
            k(f"s_add_u32 s{28+j}, s{28+j}, {64*ldw}")

    def lwrite(b):
        for j in range(4):
            k(f"ds_write_b128 v5, v[{GV['STA']+4*j}:{GV['STA']+4*j+3}] offset:{b*32768+j*4096}")
        for j in range(4):
            k(f"ds_write_b128 v6, v[{GV['STW']+4*j}:{GV['STW']+4*j+3}] offset:{b*32768+j*4096}")

    def fread(b, s, f):
        fa, fw = (GV['F0A'], GV['F0W']) if f == 0 else (GV['F1A'], GV['F1W'])
        for i in range(2):
            k(f"ds_read_b128 v[{fa+4*i}:{fa+4*i+3}], v{12+s} offset:{b*32768+i*4096}")
        for i in range(2):
            for u in range(2):
                k(f"ds_read_b64_tr_b16 v[{fw+4*i+2*u}:{fw+4*i+2*u+1}], v{10+i} offset:{b*32768+s*4096+u*1024}")

    def compute(b):
        fread(b, 0, 0)
        for s in range(4):
            if s < 3:
                fread(b, s + 1, (s + 1) & 1)
                k("s_waitcnt lgkmcnt(6)")
            else:
                k("s_waitcnt lgkmcnt(0)")
            fa, fw = (GV['F0A'], GV['F0W']) if (s & 1) == 0 else (GV['F1A'], GV['F1W'])
            for i_n in range(2):
                for i_m in range(2):
                    acc = GV['ACC'] + 16 * (2 * i_n + i_m)
                    k(f"v_mfma_f32_32x32x16_bf16 v[{acc}:{acc+15}], v[{fw+4*i_n}:{fw+4*i_n+3}], "
                      f"v[{fa+4*i_m}:{fa+4*i_m+3}], v[{acc}:{acc+15}]")

    gload()
    k("s_waitcnt vmcnt(0)")
    lwrite(0)
    gload()
    k("s_waitcnt lgkmcnt(0)")
    k("s_barrier")
    k(f"s_mov_b32 s22, {nt // 2}")
    k.label(f"L_{name}_loop")
    compute(0)
    k("s_waitcnt vmcnt(0)")
    lwrite(1)
    gload()
    k("s_waitcnt lgkmcnt(0)")
    k("s_barrier")
    compute(1)
    k("s_waitcnt vmcnt(0)")
    lwrite(0)
    gload()
    k("s_waitcnt lgkmcnt(0)")
    k("s_barrier")
    k("s_sub_u32 s22, s22, 1")
    k("s_cmp_lg_u32 s22, 0")
    k(f"s_cbranch_scc1 L_{name}_loop")
    k("s_waitcnt vmcnt(0)")
    k("s_nop 7")
    k("s_nop 7")
    epilogue(k)
    k.label(f"L_{name}_done")
    kernel_end(k, name, vgpr)


def epi_lane_coords(k):
    k("""
    v_and_b32 v9, 63, v0
    v_and_b32 v1, 31, v9
    v_lshrrev_b32 v2, 5, v9
    v_lshrrev_b32 v8, 6, v0
    v_lshrrev_b32 v7, 1, v8
    v_and_b32 v8, 1, v8
    """)


def epi_store_bf16(k, ldc, pre=None):
    epi_lane_coords(k)
    k(f"""
    v_lshl_add_u32 v3, v7, 6, v1
    v_mul_u32_u24 v3, {ldc}, v3
    v_lshlrev_b32 v4, 3, v2               ; h*4*2 bytes
    v_lshl_add_u32 v4, v8, 7, v4          ; + wn*64*2
    v_add_u32 v3, v3, v4
    s_mov_b32 s23, {32*ldc}
    """)
    for i_n in range(2):
        for i_m in range(2):
            for g in range(4):
                a = GV['ACC'] + 16 * (2 * i_n + i_m) + 4 * g
                if pre:
                    pre(k, i_n, i_m, g, a)
                k(f"v_cvt_pk_bf16_f32 v16, v{a}, v{a+1}")
                k(f"v_cvt_pk_bf16_f32 v17, v{a+2}, v{a+3}")
                so = "s23" if i_m else "0"
                k(f"buffer_store_dwordx2 v[16:17], v3, s[12:15], {so} offen offset:{i_n*64+g*16}")
                k("s_nop 1")


def gen_qkv(k):
    def decode(k):
        k(f"""
        s_load_dwordx4 s[32:35], s[0:1], {A_CKV*8}
        s_load_dwordx4 s[36:39], s[0:1], {A_WUK*8}
        s_load_dwordx2 s[40:41], s[0:1], {D_WS*8}
        s_and_b32 s16, s2, 31             ; nt
        s_lshr_b32 s17, s2, 5
        s_and_b32 s17, s17, 15            ; mt
        s_lshr_b32 s18, s2, 9             ; sel
        s_waitcnt lgkmcnt(0)
        """)
        k(f"""
        s_add_u32 s42, s40, {WS_XLN}
        s_addc_u32 s43, s41, 0
        s_cmp_eq_u32 s18, 0
        s_cselect_b32 s44, s42, s32
        s_cselect_b32 s45, s43, s33
        s_cselect_b32 s46, s34, s36
        s_cselect_b32 s47, s35, s37
        s_cmp_eq_u32 s18, 2
        s_cselect_b32 s46, s38, s46
        s_cselect_b32 s47, s39, s47
        s_lshl_b32 s19, s17, 17           ; mt*128*1024
        s_add_u32 s44, s44, s19
        s_addc_u32 s45, s45, 0
        """)
        srd(k, 4, 44, 45, 128 * 1024)
        k(f"""
        s_lshl_b32 s19, s16, 8            ; n0*2
        s_add_u32 s46, s46, s19
        s_addc_u32 s47, s47, 0
        s_sub_u32 s20, {512*8192}, s19
        """)
        srd(k, 8, 46, 47, "s20")
        k(f"""
        s_mul_i32 s20, s18, 0x1000000
        s_add_u32 s20, s20, {WS_Q}
        s_lshl_b32 s21, s17, 20
        s_add_u32 s20, s20, s21
        s_add_u32 s20, s20, s19
        s_add_u32 s44, s40, s20
        s_addc_u32 s45, s41, 0
        """)
        srd(k, 12, 44, 45, 128 * 8192)

    gemm_kernel(k, "qkv_kernel", 1536, decode, 1024, 8192, 8, lambda k: epi_store_bf16(k, 8192))


def gen_attn(k):
    name = "attn_kernel"
    KA, VA, QF, SA, PR, OA, FR, ST = 16, 24, 32, 64, 96, 112, 176, 208
    VM, VL, VT0, VT1, VT2, VT3 = 240, 241, 243, 244, 245, 246
    kernel_begin(k, name)
    k(f"""
    s_cmp_ge_u32 s2, 512
    s_cbranch_scc1 L_{name}_done
    s_load_dwordx2 s[40:41], s[0:1], {D_WS*8}
    s_and_b32 s16, s2, 7
    s_lshr_b32 s17, s2, 3
    s_and_b32 s17, s17, 3
    s_lshl_b32 s17, s17, 3
    s_add_u32 s16, s16, s17            ; head
    s_lshr_b32 s17, s2, 5
    s_sub_u32 s17, 15, s17             ; qb
    s_lshl_b32 s18, s17, 7             ; q0
    s_add_u32 s19, s17, 1
    s_lshl_b32 s19, s19, 1             ; nkt
    s_lshl_b32 s20, s16, 8
    s_waitcnt lgkmcnt(0)
    s_add_u32 s42, s40, {WS_Q}
    s_addc_u32 s43, s41, 0
    s_add_u32 s42, s42, s20
    s_addc_u32 s43, s43, 0
    """)
    srd(k, 4, 42, 43, 2048 * 8192)
    k(f"""
    s_add_u32 s42, s40, {WS_K}
    s_addc_u32 s43, s41, 0
    s_add_u32 s42, s42, s20
    s_addc_u32 s43, s43, 0
    """)
    srd(k, 8, 42, 43, 2048 * 8192)
    k(f"""
    s_add_u32 s42, s40, {WS_V}
    s_addc_u32 s43, s41, 0
    s_add_u32 s42, s42, s20
    s_addc_u32 s43, s43, 0
    """)
    srd(k, 12, 42, 43, 2048 * 8192)
    k(f"""
    s_add_u32 s42, s40, {WS_CTX}
    s_addc_u32 s43, s41, 0
    s_add_u32 s42, s42, s20
    s_addc_u32 s43, s43, 0
    """)
    srd(k, 44, 42, 43, 2048 * 8192)
    k(f"""
    v_and_b32 v1, 63, v0                  ; lane
    v_lshrrev_b32 v2, 6, v0               ; wave
    v_and_b32 v3, 31, v1                  ; l&31
    v_lshrrev_b32 v4, 5, v1               ; h
    v_lshl_add_u32 v5, v2, 5, v3          ; 32w + (l&31)
    v_add_u32 v5, s18, v5
    v_lshlrev_b32 v6, 13, v5              ; query*8192
    v_lshl_add_u32 v6, v4, 4, v6
    """)
    for s in range(8):
        k(f"buffer_load_dwordx4 v[{QF+4*s}:{QF+4*s+3}], v6, s[4:7], 0 offen offset:{s*32}")
    k(f"""
    v_lshrrev_b32 v7, 4, v0
    v_and_b32 v8, 15, v0
    v_lshlrev_b32 v9, 13, v7
    v_lshl_add_u32 v9, v8, 4, v9
    v_xor_b32 v10, v8, v7
    v_lshlrev_b32 v11, 8, v7
    v_lshl_add_u32 v10, v10, 4, v11
    v_and_b32 v12, 3, v7
    v_lshlrev_b32 v12, 2, v12
    v_xor_b32 v12, v12, v8
    v_lshl_add_u32 v11, v12, 4, v11
    v_add_u32 v11, 16384, v11
    """)
    k(f"""
    v_and_b32 v12, 15, v1
    v_lshlrev_b32 v13, 8, v3
    """)
    for s in range(8):
        k(f"""
        v_add_u32 v14, {2*s}, v4
        v_xor_b32 v14, v14, v12
        v_lshl_add_u32 v{KA+s}, v14, 4, v13
        """)
    k(f"""
    v_and_b32 v12, 15, v1                 ; c
    v_lshrrev_b32 v13, 2, v12             ; r
    v_and_b32 v12, 3, v12                 ; col4
    v_lshrrev_b32 v14, 4, v1              ; g
    v_lshrrev_b32 v15, 1, v14             ; h
    v_lshl_add_u32 v15, v15, 2, v13       ; 4h + r
    v_lshlrev_b32 v15, 8, v15             ; *256
    v_and_b32 v14, 1, v14
    v_lshlrev_b32 v14, 1, v14
    v_lshrrev_b32 v7, 1, v12
    v_add_u32 v14, v14, v7                ; 2*(g&1) + (col4>>1)
    v_and_b32 v12, 1, v12
    v_lshl_add_u32 v15, v12, 3, v15       ; + (col4&1)*8
    v_add_u32 v15, 16384, v15
    v_lshlrev_b32 v13, 2, v13             ; r<<2
    """)
    for t in range(4):
        k(f"""
        v_add_u32 v7, {4*t}, v14
        v_xor_b32 v7, v7, v13
        v_lshl_add_u32 v{VA+t}, v7, 4, v15
        """)
    k(f"v_mov_b32 v{VM}, 0xff800000")
    k(f"v_mov_b32 v{VL}, 0")
    for i in range(64):
        k(f"v_mov_b32 v{OA+i}, 0")
    k("s_mov_b32 s24, 0")

    def gload():
        for j in range(4):
            k(f"s_add_u32 s25, s24, {j*16*8192}")
            k(f"buffer_load_dwordx4 v[{ST+4*j}:{ST+4*j+3}], v9, s[8:11], s25 offen")
            k(f"buffer_load_dwordx4 v[{ST+16+4*j}:{ST+16+4*j+3}], v9, s[12:15], s25 offen")
        k(f"s_add_u32 s24, s24, {64*8192}")

    def lwrite(b):
        for j in range(4):
            k(f"ds_write_b128 v10, v[{ST+4*j}:{ST+4*j+3}] offset:{b*32768+j*4096}")
            k(f"ds_write_b128 v11, v[{ST+16+4*j}:{ST+16+4*j+3}] offset:{b*32768+j*4096}")

    def body(b):
        for a in range(2):
            for s in range(8):
                k(f"ds_read_b128 v[{FR+4*s}:{FR+4*s+3}], v{KA+s} offset:{b*32768+a*8192}")
            for s in range(8):
                k(f"s_waitcnt lgkmcnt({7-s})")
                c = "0" if s == 0 else f"v[{SA+16*a}:{SA+16*a+15}]"
                k(f"v_mfma_f32_32x32x16_bf16 v[{SA+16*a}:{SA+16*a+15}], v[{FR+4*s}:{FR+4*s+3}], "
                  f"v[{QF+4*s}:{QF+4*s+3}], {c}")
        def vread(t, base):
            for j in range(4):
                for u in range(2):
                    k(f"ds_read_b64_tr_b16 v[{base+4*j+2*u}:{base+4*j+2*u+1}], v{VA+t} offset:{b*32768+j*4096+u*2048}")
        k("s_nop 7")
        vread(0, FR)
        vread(1, FR + 16)
        for i in range(16):
            k(f"v_cvt_pk_bf16_f32 v{VT0}, v{SA+2*i}, v{SA+2*i+1}")
            k(f"v_lshlrev_b32 v{SA+2*i}, 16, v{VT0}")
            k(f"v_and_b32 v{SA+2*i+1}, 0xffff0000, v{VT0}")
            k(f"v_mul_f32 v{SA+2*i}, s30, v{SA+2*i}")
            k(f"v_mul_f32 v{SA+2*i+1}, s30, v{SA+2*i+1}")
            k(f"v_cvt_pk_bf16_f32 v{VT0}, v{SA+2*i}, v{SA+2*i+1}")
            k(f"v_lshlrev_b32 v{SA+2*i}, 16, v{VT0}")
            k(f"v_and_b32 v{SA+2*i+1}, 0xffff0000, v{VT0}")
        lab = f"L_{name}_nomask{b}"
        k(f"""
        s_add_u32 s26, s21, 63
        s_cmp_le_u32 s26, s18
        s_cbranch_scc1 {lab}
        v_lshlrev_b32 v{VT1}, 2, v4           ; 4h
        v_add_u32 v{VT1}, s21, v{VT1}
        """)
        for a in range(2):
            for r in range(16):
                off = a * 32 + 8 * (r >> 2) + (r & 3)
                k(f"v_add_u32 v{VT2}, {off}, v{VT1}")
                k(f"v_cmp_gt_u32 vcc, v{VT2}, v5")
                k(f"v_cndmask_b32 v{SA+16*a+r}, v{SA+16*a+r}, v{VT3}, vcc")
        k.label(lab)
        k(f"v_max3_f32 v{VT0}, v{SA}, v{SA+1}, v{SA+2}")
        for i in range(3, 31, 2):
            k(f"v_max3_f32 v{VT0}, v{VT0}, v{SA+i}, v{SA+i+1}")
        k(f"v_max_f32 v{VT0}, v{VT0}, v{SA+31}")
        k(f"v_mov_b32 v{VT1}, v{VT0}")
        k("s_nop 1")
        k(f"v_permlane32_swap_b32 v{VT1}, v{VT0}")
        k("s_nop 1")
        k(f"v_max3_f32 v{VT0}, v{VT0}, v{VT1}, v{VM}")
        k(f"v_sub_f32 v{VT1}, v{VM}, v{VT0}")
        k(f"v_mul_f32 v{VT1}, s31, v{VT1}")
        k(f"v_exp_f32 v{VT1}, v{VT1}")
        k(f"v_mov_b32 v{VM}, v{VT0}")
        k(f"v_mul_f32 v{VT2}, s31, v{VT0}")
        for i in range(32):
            k(f"v_fma_f32 v{SA+i}, v{SA+i}, s31, -v{VT2}")
        for i in range(32):
            k(f"v_exp_f32 v{SA+i}, v{SA+i}")
        k(f"v_mul_f32 v{VL}, v{VL}, v{VT1}")
        for i in range(32):
            k(f"v_add_f32 v{VL}, v{VL}, v{SA+i}")
        for i in range(16):
            k(f"v_cvt_pk_bf16_f32 v{PR+i}, v{SA+2*i}, v{SA+2*i+1}")
        for i in range(64):
            k(f"v_mul_f32 v{OA+i}, v{OA+i}, v{VT1}")
        k("s_nop 1")
        for t in range(4):
            base = FR + 16 * (t & 1)
            for j in range(4):
                k(f"s_waitcnt lgkmcnt({(3-j)*2 + (8 if t < 3 and False else 0)})" if (t % 2 == 1 or t == 0) and False else "s_nop 0")
            k("s_waitcnt lgkmcnt(0)")
            for j in range(4):
                k(f"v_mfma_f32_32x32x16_bf16 v[{OA+16*t}:{OA+16*t+15}], v[{base+4*j}:{base+4*j+3}], "
                  f"v[{PR+4*j}:{PR+4*j+3}], v[{OA+16*t}:{OA+16*t+15}]")
            if t < 2:
                vread(t + 2, base)

    k("s_mov_b32 s30, 0x3db504f3")
    k("s_mov_b32 s31, 0x3fb8aa3b")
    k(f"v_mov_b32 v{VT3}, 0xf149f2ca")
    gload()
    k("s_waitcnt vmcnt(0)")
    lwrite(0)
    k("s_mov_b32 s21, 0")
    k("s_mov_b32 s22, s19")
    k("s_waitcnt lgkmcnt(0)")
    k("s_barrier")
    k.label(f"L_{name}_loop")
    for b in range(2):
        gload()
        body(b)
        k("s_waitcnt vmcnt(0)")
        lwrite(b ^ 1)
        k("s_add_u32 s21, s21, 64")
        k("s_waitcnt lgkmcnt(0)")
        k("s_barrier")
    k("s_sub_u32 s22, s22, 2")
    k("s_cmp_lg_u32 s22, 0")
    k(f"s_cbranch_scc1 L_{name}_loop")
    k(f"""
    v_mov_b32 v{VT1}, v{VL}
    s_nop 1
    v_permlane32_swap_b32 v{VT1}, v{VL}
    s_nop 1
    v_add_f32 v{VL}, v{VL}, v{VT1}
    v_rcp_f32 v{VT0}, v{VL}
    s_nop 7
    s_nop 7
    v_fma_f32 v{VT1}, -v{VT0}, v{VL}, 1.0
    v_fmac_f32 v{VT0}, v{VT1}, v{VT0}
    v_lshlrev_b32 v6, 13, v5
    v_lshl_add_u32 v6, v4, 3, v6          ; query*8192 + h*8
    """)
    for t in range(4):
        for g in range(4):
            a = OA + 16 * t + 4 * g
            for i in range(4):
                k(f"v_mul_f32 v{a+i}, v{a+i}, v{VT0}")
            k(f"v_cvt_pk_bf16_f32 v{VT1}, v{a}, v{a+1}")
            k(f"v_cvt_pk_bf16_f32 v{VT2}, v{a+2}, v{a+3}")
            k(f"buffer_store_dwordx2 v[{VT1}:{VT2}], v6, s[44:47], 0 offen offset:{t*64+g*16}")
            k("s_nop 1")
    k.label(f"L_{name}_done")
    kernel_end(k, name, 248)


def epi_store_f32(k, ldc):
    epi_lane_coords(k)
    k(f"""
    v_lshl_add_u32 v3, v7, 6, v1
    v_mul_u32_u24 v3, {ldc}, v3
    v_lshlrev_b32 v4, 4, v2               ; h*4*4 bytes
    v_lshl_add_u32 v4, v8, 8, v4          ; + wn*64*4
    v_add_u32 v3, v3, v4
    s_mov_b32 s23, {32*ldc}
    """)
    for i_n in range(2):
        for i_m in range(2):
            for g in range(4):
                a = GV['ACC'] + 16 * (2 * i_n + i_m) + 4 * g
                so = "s23" if i_m else "0"
                k(f"buffer_store_dwordx4 v[{a}:{a+3}], v3, s[12:15], {so} offen offset:{i_n*128+g*32}")


def gen_oproj(k):
    def decode(k):
        k(f"""
        s_load_dwordx2 s[32:33], s[0:1], {A_WO*8}
        s_load_dwordx2 s[40:41], s[0:1], {D_WS*8}
        s_and_b32 s16, s2, 3              ; nt
        s_lshr_b32 s17, s2, 2
        s_and_b32 s17, s17, 15            ; mt
        s_lshr_b32 s18, s2, 6             ; ks
        s_waitcnt lgkmcnt(0)
        s_add_u32 s44, s40, {WS_CTX}
        s_addc_u32 s45, s41, 0
        s_lshl_b32 s19, s17, 20           ; mt*128*8192
        s_lshl_b32 s20, s18, 11           ; ks*1024*2
        s_add_u32 s19, s19, s20
        s_add_u32 s44, s44, s19
        s_addc_u32 s45, s45, 0
        """)
        srd(k, 4, 44, 45, 128 * 8192 - 0)
        k(f"""
        s_lshl_b32 s19, s16, 8            ; n0*2
        s_lshl_b32 s20, s18, 20           ; ks*1024*1024
        s_add_u32 s19, s19, s20
        s_add_u32 s46, s32, s19
        s_addc_u32 s47, s33, 0
        s_sub_u32 s20, {4096*1024}, s19
        """)
        srd(k, 8, 46, 47, "s20")
        k(f"""
        s_lshl_b32 s20, s18, 22           ; ks*2048*2048
        s_add_u32 s20, s20, {WS_PART}
        s_lshl_b32 s21, s17, 18           ; mt*128*2048
        s_add_u32 s20, s20, s21
        s_lshl_b32 s21, s16, 9            ; n0*4
        s_add_u32 s20, s20, s21
        s_add_u32 s44, s40, s20
        s_addc_u32 s45, s41, 0
        """)
        srd(k, 12, 44, 45, 128 * 2048)

    gemm_kernel(k, "oproj_kernel", 256, decode, 8192, 1024, 16, lambda k: epi_store_f32(k, 2048))


def load_bias(k, i_n, g):
    k(f"buffer_load_dwordx2 v[18:19], v15, s[56:59], 0 offen offset:{i_n*64+g*16}")


def gen_ffn1(k):
    def decode(k):
        k(f"""
        s_load_dwordx4 s[32:35], s[0:1], {B_W1*8}
        s_load_dwordx2 s[40:41], s[0:1], {D_WS*8}
        s_and_b32 s17, s2, 15             ; mt
        s_lshr_b32 s16, s2, 4             ; nt
        s_waitcnt lgkmcnt(0)
        s_add_u32 s44, s40, {WS_HLN}
        s_addc_u32 s45, s41, 0
        s_lshl_b32 s19, s17, 17           ; mt*128*1024
        s_add_u32 s44, s44, s19
        s_addc_u32 s45, s45, 0
        """)
        srd(k, 4, 44, 45, 128 * 1024)
        k(f"""
        s_lshl_b32 s19, s16, 8            ; n0*2
        s_add_u32 s46, s32, s19
        s_addc_u32 s47, s33, 0
        s_sub_u32 s20, {512*2752}, s19
        """)
        srd(k, 8, 46, 47, "s20")
        k(f"""
        s_add_u32 s46, s34, s19
        s_addc_u32 s47, s35, 0
        s_sub_u32 s20, {1376*2}, s19
        """)
        srd(k, 56, 46, 47, "s20")
        k(f"""
        s_mul_i32 s20, s17, {128*H1_PITCH*2}
        s_add_u32 s20, s20, {WS_H1}
        s_add_u32 s20, s20, s19
        s_add_u32 s44, s40, s20
        s_addc_u32 s45, s41, 0
        """)
        srd(k, 12, 44, 45, 128 * H1_PITCH * 2)

    def pre(k, i_n, i_m, g, a):
        load_bias(k, i_n, g)
        k("s_waitcnt vmcnt(0)")
        k(f"v_cvt_pk_bf16_f32 v20, v{a}, v{a+1}")
        k(f"v_cvt_pk_bf16_f32 v21, v{a+2}, v{a+3}")
        for i in range(4):
            src = 20 + (i >> 1)
            bsrc = 18 + (i >> 1)
            if i & 1:
                k(f"v_and_b32 v{22+i}, 0xffff0000, v{src}")
                k(f"v_and_b32 v{26+i}, 0xffff0000, v{bsrc}")
            else:
                k(f"v_lshlrev_b32 v{22+i}, 16, v{src}")
                k(f"v_lshlrev_b32 v{26+i}, 16, v{bsrc}")
        for i in range(4):
            k(f"v_add_f32 v{22+i}, v{22+i}, v{26+i}")
        k("v_cvt_pk_bf16_f32 v20, v22, v23")
        k("v_cvt_pk_bf16_f32 v21, v24, v25")
        for i in range(4):
            src = 20 + (i >> 1)
            if i & 1:
                k(f"v_and_b32 v{22+i}, 0xffff0000, v{src}")
            else:
                k(f"v_lshlrev_b32 v{22+i}, 16, v{src}")
        for i in range(4):
            k(f"v_mul_f32 v{26+i}, v{22+i}, v{22+i}")
            k(f"v_fma_f32 v{26+i}, v{26+i}, s36, v31")
            k(f"v_mul_f32 v{26+i}, v{26+i}, v{22+i}")
            k(f"v_exp_f32 v{26+i}, v{26+i}")
        k("s_nop 0")
        for i in range(4):
            k(f"v_add_f32 v{26+i}, 1.0, v{26+i}")
            k(f"v_rcp_f32 v{26+i}, v{26+i}")
        k("s_nop 0")
        for i in range(4):
            k(f"v_mul_f32 v{26+i}, v{26+i}, v{22+i}")
            k(f"v_sub_f32 v{a+i}, v{22+i}, v{26+i}")

    def epi(k):
        import math
        c0 = 2.0 * math.log2(math.e) * math.sqrt(2.0 / math.pi)
        c1 = c0 * 0.044715
        import struct
        f = lambda x: struct.unpack("<I", struct.pack("<f", x))[0]
        k(f"s_mov_b32 s36, {f(c1):#x}")
        k(f"v_mov_b32 v31, {f(c0):#x}")
        epi_lane_coords(k)
        k("""
        v_lshlrev_b32 v15, 3, v2
        v_lshl_add_u32 v15, v8, 7, v15
        """)
        epi_store_bf16(k, H1_PITCH * 2, pre)

    gemm_kernel(k, "ffn1_kernel", 176, decode, 1024, 2752, 8, epi)


def gen_ffn2(k):
    def decode(k):
        k(f"""
        s_load_dwordx4 s[32:35], s[0:1], {B_W2*8}
        s_load_dwordx2 s[40:41], s[0:1], {D_WS*8}
        s_load_dwordx2 s[48:49], s[0:1], {D_OUT*8}
        s_and_b32 s16, s2, 3              ; nt
        s_lshr_b32 s17, s2, 2             ; mt
        s_waitcnt lgkmcnt(0)
        s_mul_i32 s19, s17, {128*H1_PITCH*2}
        s_add_u32 s19, s19, {WS_H1}
        s_add_u32 s44, s40, s19
        s_addc_u32 s45, s41, 0
        """)
        srd(k, 4, 44, 45, 128 * H1_PITCH * 2)
        k(f"""
        s_lshl_b32 s19, s16, 8            ; n0*2
        s_add_u32 s46, s32, s19
        s_addc_u32 s47, s33, 0
        s_sub_u32 s20, {1376*1024}, s19
        """)
        srd(k, 8, 46, 47, "s20")
        k(f"""
        s_add_u32 s46, s34, s19
        s_addc_u32 s47, s35, 0
        """)
        srd(k, 56, 46, 47, 256)
        k(f"""
        s_lshl_b32 s20, s17, 17
        s_add_u32 s20, s20, s19
        s_add_u32 s44, s48, s20
        s_addc_u32 s45, s49, 0
        """)
        srd(k, 12, 44, 45, 128 * 1024)
        k(f"""
        s_add_u32 s20, s20, {WS_H}
        s_add_u32 s44, s40, s20
        s_addc_u32 s45, s41, 0
        """)
        srd(k, 52, 44, 45, 128 * 1024)

    def pre(k, i_n, i_m, g, a):
        load_bias(k, i_n, g)
        so = "s23" if i_m else "0"
        k(f"buffer_load_dwordx2 v[30:31], v3, s[52:55], {so} offen offset:{i_n*64+g*16}")
        k("s_waitcnt vmcnt(0)")
        k(f"v_cvt_pk_bf16_f32 v20, v{a}, v{a+1}")
        k(f"v_cvt_pk_bf16_f32 v21, v{a+2}, v{a+3}")
        for i in range(4):
            src = 20 + (i >> 1)
            bsrc = 18 + (i >> 1)
            if i & 1:
                k(f"v_and_b32 v{22+i}, 0xffff0000, v{src}")
                k(f"v_and_b32 v{26+i}, 0xffff0000, v{bsrc}")
            else:
                k(f"v_lshlrev_b32 v{22+i}, 16, v{src}")
                k(f"v_lshlrev_b32 v{26+i}, 16, v{bsrc}")
        for i in range(4):
            k(f"v_add_f32 v{22+i}, v{22+i}, v{26+i}")
        k("v_cvt_pk_bf16_f32 v20, v22, v23")
        k("v_cvt_pk_bf16_f32 v21, v24, v25")
        for i in range(4):
            src = 20 + (i >> 1)
            hsrc = 30 + (i >> 1)
            if i & 1:
                k(f"v_and_b32 v{22+i}, 0xffff0000, v{src}")
                k(f"v_and_b32 v{26+i}, 0xffff0000, v{hsrc}")
            else:
                k(f"v_lshlrev_b32 v{22+i}, 16, v{src}")
                k(f"v_lshlrev_b32 v{26+i}, 16, v{hsrc}")
        for i in range(4):
            k(f"v_add_f32 v{a+i}, v{22+i}, v{26+i}")

    def epi(k):
        epi_lane_coords(k)
        k("""
        v_lshlrev_b32 v15, 3, v2
        v_lshl_add_u32 v15, v8, 7, v15
        """)
        epi_store_bf16(k, 1024, pre)

    gemm_kernel(k, "ffn2_kernel", 64, decode, H1_PITCH * 2, 1024, 22, epi)


def main():
    k = Asm()
    hdr = open(OUT + ".ref").read().split("; Override launch")[0]
    k.raw(hdr.rstrip("\n"))
    k.raw("; @launch kernel=ln1_kernel grid=(512,1,1) block=(256,1,1) lds=0")
    k.raw("; @launch kernel=qkv_kernel grid=(1536,1,1) block=(256,1,1) lds=65536")
    k.raw("; @launch kernel=attn_kernel grid=(512,1,1) block=(256,1,1) lds=65536")
    k.raw("; @launch kernel=oproj_kernel grid=(256,1,1) block=(256,1,1) lds=65536")
    k.raw("; @launch kernel=ln2_kernel grid=(512,1,1) block=(256,1,1) lds=0")
    k.raw("; @launch kernel=ffn1_kernel grid=(176,1,1) block=(256,1,1) lds=65536")
    k.raw("; @launch kernel=ffn2_kernel grid=(64,1,1) block=(256,1,1) lds=65536")
    k.raw('.amdgcn_target "amdgcn-amd-amdhsa--gfx950"')
    ln_kernel(k, "ln1_kernel", 1)
    gen_qkv(k)
    gen_attn(k)
    gen_oproj(k)
    ln_kernel(k, "ln2_kernel", 2)
    gen_ffn1(k)
    gen_ffn2(k)
    open(OUT, "w").write(k.text())


if __name__ == "__main__":
    main()
```

```python
import sys

NAME = "sequential_preLN__compressed_kv_cla__dense_activation_gelu__prompt"
OUT = "cdna_kernels/" + NAME + ".s"

WS_XLN, WS_Q, WS_K, WS_V, WS_CTX, WS_PART, WS_H, WS_HLN, WS_H1 = (
    0, 0x200000, 0x1200000, 0x2200000, 0x3200000, 0x4200000, 0x5200000, 0x5400000, 0x5600000)
H1_PITCH = 1408

A_X, A_CKV, A_WQ, A_WUK, A_WUV, A_WO, B_X, B_W1, B_B1, B_W2, B_B2, D_OUT, D_DBG, D_WS = range(14)


class Asm:
    def __init__(self):
        self.l = []

    def __call__(self, s):
        for line in s.strip("\n").split("\n"):
            self.l.append("  " + line.strip())

    def label(self, s):
        self.l.append(s + ":")

    def raw(self, s):
        self.l.append(s)

    def text(self):
        return "\n".join(self.l) + "\n"


def kernel_begin(k, name):
    k.raw(".text")
    k.raw(f".globl {name}")
    k.raw(".p2align 8")
    k.raw(f".type {name},@function")
    k.label(name)


def kernel_end(k, name, vgpr, sgpr=96, agpr=0):
    k("s_endpgm")
    acc = (vgpr + 3) // 4 * 4
    k.raw('.section .rodata,"a"')
    k.raw(".p2align 6")
    k.raw(f".amdhsa_kernel {name}")
    k.raw(f"  .amdhsa_next_free_vgpr {acc + agpr}")
    k.raw(f"  .amdhsa_next_free_sgpr {sgpr}")
    k.raw(f"  .amdhsa_accum_offset {acc}")
    k.raw("  .amdhsa_group_segment_fixed_size 0")
    k.raw("  .amdhsa_kernarg_size 112")
    k.raw("  .amdhsa_user_sgpr_count 2")
    k.raw("  .amdhsa_user_sgpr_kernarg_segment_ptr 1")
    k.raw("  .amdhsa_system_sgpr_workgroup_id_x 1")
    k.raw(".end_amdhsa_kernel")


def srd(k, d, lo, hi, nbytes):
    k(f"s_mov_b32 s{d}, s{lo}")
    k(f"s_and_b32 s{d+1}, s{hi}, 0xffff")
    k(f"s_mov_b32 s{d+2}, {nbytes}")
    k(f"s_mov_b32 s{d+3}, 0x00020000")


def wave_allreduce_add(k, v, tmp):
    for off in (0x041F, 0x081F, 0x101F, 0x201F, 0x401F):
        k(f"ds_swizzle_b32 v{tmp}, v{v} offset:{off:#x}")
        k("s_waitcnt lgkmcnt(0)")
        k(f"v_add_f32 v{v}, v{v}, v{tmp}")
    k(f"v_mov_b32 v{tmp}, v{v}")
    k("s_nop 1")
    k(f"v_permlane32_swap_b32 v{tmp}, v{v}")
    k("s_nop 1")
    k(f"v_add_f32 v{v}, v{v}, v{tmp}")


def ln_kernel(k, name, mode):
    kernel_begin(k, name)
    k("s_cmp_ge_u32 s2, 512")
    k("s_cbranch_scc1 L_%s_done" % name)
    k(f"s_load_dwordx2 s[4:5], s[0:1], {A_X*8}")
    k(f"s_load_dwordx2 s[6:7], s[0:1], {D_WS*8}")
    k("v_lshrrev_b32 v1, 6, v0")
    k("v_and_b32 v2, 63, v0")
    k("s_lshl_b32 s3, s2, 2")
    k("v_add_u32 v1, s3, v1")
    k("v_lshlrev_b32 v3, 10, v1")
    k("v_lshl_add_u32 v3, v2, 4, v3")
    k("s_waitcnt lgkmcnt(0)")
    srd(k, 8, 4, 5, 2048 * 1024)
    if mode == 1:
        k(f"s_add_u32 s20, s6, {WS_XLN}")
        k("s_addc_u32 s21, s7, 0")
        srd(k, 12, 20, 21, 2048 * 1024)
    else:
        k(f"s_add_u32 s20, s6, {WS_HLN}")
        k("s_addc_u32 s21, s7, 0")
        srd(k, 12, 20, 21, 2048 * 1024)
        k(f"s_add_u32 s20, s6, {WS_H}")
        k("s_addc_u32 s21, s7, 0")
        srd(k, 16, 20, 21, 2048 * 1024)
        k(f"s_add_u32 s20, s6, {WS_PART}")
        k("s_addc_u32 s21, s7, 0")
        srd(k, 24, 20, 21, 4 * 2048 * 2048)
    k("buffer_load_dwordx4 v[4:7], v3, s[8:11], 0 offen")
    if mode == 2:
        k("v_lshlrev_b32 v8, 11, v1")
        k("v_lshl_add_u32 v8, v2, 5, v8")
        for p in range(4):
            k(f"s_mov_b32 s28, {p * 2048 * 2048}")
            k(f"buffer_load_dwordx4 v[{40+8*p}:{43+8*p}], v8, s[24:27], s28 offen")
            k(f"buffer_load_dwordx4 v[{44+8*p}:{47+8*p}], v8, s[24:27], s28 offen offset:16")
    k("s_waitcnt vmcnt(0)")
    for i in range(4):
        k(f"v_lshlrev_b32 v{10+2*i}, 16, v{4+i}")
        k(f"v_and_b32 v{11+2*i}, 0xffff0000, v{4+i}")
    if mode == 2:
        for i in range(8):
            k(f"v_add_f32 v{40+i}, v{40+i}, v{48+i}")
            k(f"v_add_f32 v{56+i}, v{56+i}, v{64+i}")
        for i in range(8):
            k(f"v_add_f32 v{40+i}, v{40+i}, v{56+i}")
        for i in range(4):
            k(f"v_cvt_pk_bf16_f32 v{48+i}, v{40+2*i}, v{41+2*i}")
        for i in range(4):
            k(f"v_lshlrev_b32 v{40+2*i}, 16, v{48+i}")
            k(f"v_and_b32 v{41+2*i}, 0xffff0000, v{48+i}")
        for i in range(8):
            k(f"v_add_f32 v{10+i}, v{10+i}, v{40+i}")
        for i in range(4):
            k(f"v_cvt_pk_bf16_f32 v{4+i}, v{10+2*i}, v{11+2*i}")
        for i in range(4):
            k(f"v_lshlrev_b32 v{10+2*i}, 16, v{4+i}")
            k(f"v_and_b32 v{11+2*i}, 0xffff0000, v{4+i}")
        k("buffer_store_dwordx4 v[4:7], v3, s[16:19], 0 offen")
    k("v_add_f32 v20, v10, v11")
    for i in range(2, 8):
        k(f"v_add_f32 v20, v20, v{10+i}")
    wave_allreduce_add(k, 20, 21)
    k("v_mul_f32 v20, 0x3b000000, v20")
    for i in range(8):
        k(f"v_sub_f32 v{24+i}, v{10+i}, v20")
    k("v_mul_f32 v22, v24, v24")
    for i in range(1, 8):
        k(f"v_fmac_f32 v22, v{24+i}, v{24+i}")
    wave_allreduce_add(k, 22, 21)
    k("v_mul_f32 v22, 0x3b000000, v22")
    k("v_cvt_pk_bf16_f32 v23, v20, v22")
    k("v_lshlrev_b32 v20, 16, v23")
    k("v_and_b32 v22, 0xffff0000, v23")
    k("v_add_f32 v22, 0x3727c5ac, v22")
    k("v_cvt_pk_bf16_f32 v22, v22, v22")
    k("v_lshlrev_b32 v22, 16, v22")
    k("v_sqrt_f32 v22, v22")
    k("s_nop 1")
    k("v_cvt_pk_bf16_f32 v22, v22, v22")
    k("v_lshlrev_b32 v22, 16, v22")
    k("v_rcp_f32 v23, v22")
    k("s_nop 1")
    for i in range(8):
        k(f"v_sub_f32 v{24+i}, v{10+i}, v20")
    for i in range(4):
        k(f"v_cvt_pk_bf16_f32 v{32+i}, v{24+2*i}, v{25+2*i}")
    for i in range(4):
        k(f"v_lshlrev_b32 v{24+2*i}, 16, v{32+i}")
        k(f"v_and_b32 v{25+2*i}, 0xffff0000, v{32+i}")
    for i in range(8):
        k(f"v_mul_f32 v{32+i}, v{24+i}, v23")
    for i in range(8):
        k(f"v_fma_f32 v{10+i}, -v{32+i}, v22, v{24+i}")
    for i in range(8):
        k(f"v_fmac_f32 v{32+i}, v{10+i}, v23")
    for i in range(4):
        k(f"v_cvt_pk_bf16_f32 v{4+i}, v{32+2*i}, v{33+2*i}")
    k("buffer_store_dwordx4 v[4:7], v3, s[12:15], 0 offen")
    k.label("L_%s_done" % name)
    kernel_end(k, name, 72)


GV = dict(STA=16, STW=32, F0A=48, F0W=56, F1A=64, F1W=72, ACC=80)


def gemm_kernel(k, name, nwg, decode, lda, ldw, nt, epilogue, vgpr=144):
    assert nt % 2 == 0
    kernel_begin(k, name)
    k(f"s_cmp_ge_u32 s2, {nwg}")
    k(f"s_cbranch_scc1 L_{name}_done")
    decode(k)
    k(f"""
    v_and_b32 v1, 63, v0
    v_lshrrev_b32 v2, 6, v0               ; wave
    s_nop 1
    v_readfirstlane_b32 s50, v2
    v_lshrrev_b32 v5, 3, v1               ; lane>>3
    v_and_b32 v6, 7, v1
    v_lshrrev_b32 v7, 4, v1               ; lane>>4
    v_and_b32 v8, 1, v2
    v_lshl_add_u32 v8, v8, 2, v7          ; (lane>>4) + 4*(w&1)
    v_xor_b32 v6, v6, v8
    v_mul_u32_u24 v3, {lda}, v5
    v_lshl_add_u32 v3, v6, 4, v3
    v_and_b32 v6, 15, v1
    v_lshlrev_b32 v8, 2, v7
    v_xor_b32 v6, v6, v8
    v_mul_u32_u24 v4, {ldw}, v7
    v_lshl_add_u32 v4, v6, 4, v4
    """)
    k("""
    v_and_b32 v1, 63, v0
    v_lshrrev_b32 v2, 6, v0
    v_lshrrev_b32 v7, 1, v2               ; wm
    v_and_b32 v2, 1, v2                   ; wn
    v_and_b32 v8, 31, v1
    v_lshl_add_u32 v8, v7, 6, v8
    v_lshlrev_b32 v8, 7, v8               ; row*128
    v_lshrrev_b32 v9, 1, v1
    v_and_b32 v9, 7, v9                   ; x = (l>>1)&7
    v_lshrrev_b32 v10, 5, v1              ; h
    """)
    for s in range(4):
        k(f"""
        v_add_u32 v11, {2*s}, v10
        v_xor_b32 v11, v11, v9
        v_lshl_add_u32 v{12+s}, v11, 4, v8
        """)
    k("""
    v_and_b32 v8, 15, v1                  ; c
    v_lshrrev_b32 v9, 2, v8               ; r
    v_and_b32 v8, 3, v8                   ; col4
    v_lshrrev_b32 v7, 4, v1               ; g
    v_lshrrev_b32 v10, 1, v7              ; g>>1
    v_lshlrev_b32 v10, 3, v10             ; 8*(g>>1)
    v_add_u32 v10, v10, v9
    v_lshlrev_b32 v10, 8, v10             ; *256
    v_and_b32 v7, 1, v7                   ; g&1
    v_lshlrev_b32 v7, 1, v7               ; 2*(g&1)
    v_lshrrev_b32 v11, 1, v8              ; col4>>1
    v_add_u32 v7, v7, v11                 ; 2*(g&1) + (col4>>1)
    v_lshl_add_u32 v7, v2, 3, v7
    v_lshlrev_b32 v9, 2, v9               ; r<<2
    v_and_b32 v8, 1, v8
    v_lshlrev_b32 v8, 3, v8               ; (col4&1)*8
    v_add_u32 v10, v10, v8
    v_add_u32 v10, 16384, v10
    v_xor_b32 v11, v7, v9
    v_lshl_add_u32 v1, v11, 4, v10        ; addr i_n=0
    v_add_u32 v7, 4, v7
    v_xor_b32 v11, v7, v9
    v_lshl_add_u32 v2, v11, 4, v10        ; addr i_n=1
    v_mov_b32 v10, v1
    v_mov_b32 v11, v2
    """)
    for i in range(64):
        k(f"v_mov_b32 v{GV['ACC']+i}, 0")
    import os
    EXP = os.environ.get("GEXP", "")
    k(f"s_mul_i32 s51, s50, {8*lda}")
    k(f"s_mul_i32 s52, s50, {4*ldw}")
    for j in range(4):
        k(f"s_add_u32 s{24+j}, s51, {j*32*lda}")
        k(f"s_add_u32 s{28+j}, s52, {j*16*ldw}")
    k("s_lshl_b32 s53, s50, 10")

    def gload(b):
        for j in range(4 if "noload" not in EXP else 0):
            k(f"s_add_u32 m0, s53, {b*32768+j*4096}")
            k("s_nop 0")
            k(f"buffer_load_dwordx4 v3, s[4:7], s{24+j} offen lds")
        for j in range(4 if "noload" not in EXP else 0):
            k(f"s_add_u32 m0, s53, {b*32768+16384+j*4096}")
            k("s_nop 0")
            k(f"buffer_load_dwordx4 v4, s[8:11], s{28+j} offen lds")
        for j in range(4):
            k(f"s_add_u32 s{24+j}, s{24+j}, 128")
            k(f"s_add_u32 s{28+j}, s{28+j}, {64*ldw}")

    def fread(b, s, f):
        fa, fw = (GV['F0A'], GV['F0W']) if f == 0 else (GV['F1A'], GV['F1W'])
        for i in range(2):
            k(f"ds_read_b128 v[{fa+4*i}:{fa+4*i+3}], v{12+s} offset:{b*32768+i*4096}")
        for i in range(2):
            for u in range(2):
                k(f"ds_read_b64_tr_b16 v[{fw+4*i+2*u}:{fw+4*i+2*u+1}], v{10+i} offset:{b*32768+s*4096+u*1024}")

    def compute(b):
        fread(b, 0, 0)
        for s in range(4):
            if s < 3:
                fread(b, s + 1, (s + 1) & 1)
                k("s_waitcnt lgkmcnt(6)")
            else:
                k("s_waitcnt lgkmcnt(0)")
            fa, fw = (GV['F0A'], GV['F0W']) if (s & 1) == 0 else (GV['F1A'], GV['F1W'])
            for i_n in range(2):
                for i_m in range(2):
                    acc = GV['ACC'] + 16 * (2 * i_n + i_m)
                    if "nomfma" not in EXP: k(f"v_mfma_f32_32x32x16_bf16 v[{acc}:{acc+15}], v[{fw+4*i_n}:{fw+4*i_n+3}], "
                      f"v[{fa+4*i_m}:{fa+4*i_m+3}], v[{acc}:{acc+15}]")

    gload(0)
    k("s_waitcnt vmcnt(0)")
    k("s_barrier")
    k(f"s_mov_b32 s22, {nt // 2}")
    k.label(f"L_{name}_loop")
    gload(1)
    compute(0)
    k("s_waitcnt vmcnt(0)")
    k("s_barrier")
    gload(0)
    compute(1)
    k("s_waitcnt vmcnt(0)")
    k("s_barrier")
    k("s_sub_u32 s22, s22, 1")
    k("s_cmp_lg_u32 s22, 0")
    k(f"s_cbranch_scc1 L_{name}_loop")
    k("s_waitcnt vmcnt(0)")
    k("s_nop 7")
    k("s_nop 7")
    if "noepi" not in EXP: epilogue(k)
    k.label(f"L_{name}_done")
    kernel_end(k, name, vgpr)


def epi_lane_coords(k):
    k("""
    v_and_b32 v9, 63, v0
    v_and_b32 v1, 31, v9
    v_lshrrev_b32 v2, 5, v9
    v_lshrrev_b32 v8, 6, v0
    v_lshrrev_b32 v7, 1, v8
    v_and_b32 v8, 1, v8
    """)


def epi_store_bf16(k, ldc, pre=None):
    epi_lane_coords(k)
    k(f"""
    v_lshl_add_u32 v3, v7, 6, v1
    v_mul_u32_u24 v3, 272, v3
    v_lshlrev_b32 v4, 3, v2               ; h*4*2 bytes
    v_lshl_add_u32 v4, v8, 7, v4          ; + wn*64*2
    v_add_u32 v3, v3, v4
    v_lshrrev_b32 v5, 4, v0
    v_and_b32 v6, 15, v0
    v_mul_u32_u24 v4, 272, v5
    v_lshl_add_u32 v4, v6, 4, v4
    v_mul_u32_u24 v5, {ldc}, v5
    v_lshl_add_u32 v5, v6, 4, v5
    """)
    for i_n in range(2):
        for i_m in range(2):
            for g in range(4):
                a = GV['ACC'] + 16 * (2 * i_n + i_m) + 4 * g
                if pre:
                    pre(k, i_n, i_m, g, a)
                k(f"v_cvt_pk_bf16_f32 v16, v{a}, v{a+1}")
                k(f"v_cvt_pk_bf16_f32 v17, v{a+2}, v{a+3}")
                k(f"ds_write_b64 v3, v[16:17] offset:{i_m*32*272+i_n*64+g*16}")
    k("s_waitcnt lgkmcnt(0)")
    k("s_barrier")
    for j in range(8):
        k(f"ds_read_b128 v[{GV['ACC']+4*j}:{GV['ACC']+4*j+3}], v4 offset:{j*16*272}")
    for j in range(8):
        k(f"s_mov_b32 s23, {j*16*ldc}")
        k(f"s_waitcnt lgkmcnt({7-j})")
        k(f"buffer_store_dwordx4 v[{GV['ACC']+4*j}:{GV['ACC']+4*j+3}], v5, s[12:15], s23 offen")


def gen_qkv(k):
    def decode(k):
        k(f"""
        s_load_dwordx4 s[32:35], s[0:1], {A_CKV*8}
        s_load_dwordx4 s[36:39], s[0:1], {A_WUK*8}
        s_load_dwordx2 s[40:41], s[0:1], {D_WS*8}
        s_and_b32 s16, s2, 31             ; nt
        s_lshr_b32 s17, s2, 5
        s_and_b32 s17, s17, 15            ; mt
        s_lshr_b32 s18, s2, 9             ; sel
        s_waitcnt lgkmcnt(0)
        """)
        k(f"""
        s_add_u32 s42, s40, {WS_XLN}
        s_addc_u32 s43, s41, 0
        s_cmp_eq_u32 s18, 0
        s_cselect_b32 s44, s42, s32
        s_cselect_b32 s45, s43, s33
        s_cselect_b32 s46, s34, s36
        s_cselect_b32 s47, s35, s37
        s_cmp_eq_u32 s18, 2
        s_cselect_b32 s46, s38, s46
        s_cselect_b32 s47, s39, s47
        s_lshl_b32 s19, s17, 17           ; mt*128*1024
        s_add_u32 s44, s44, s19
        s_addc_u32 s45, s45, 0
        """)
        srd(k, 4, 44, 45, 128 * 1024)
        k(f"""
        s_lshl_b32 s19, s16, 8            ; n0*2
        s_add_u32 s46, s46, s19
        s_addc_u32 s47, s47, 0
        s_sub_u32 s20, {512*8192}, s19
        """)
        srd(k, 8, 46, 47, "s20")
        k(f"""
        s_mul_i32 s20, s18, 0x1000000
        s_add_u32 s20, s20, {WS_Q}
        s_lshl_b32 s21, s17, 20
        s_add_u32 s20, s20, s21
        s_add_u32 s20, s20, s19
        s_add_u32 s44, s40, s20
        s_addc_u32 s45, s41, 0
        """)
        srd(k, 12, 44, 45, 128 * 8192)

    gemm_kernel(k, "qkv_kernel", 1536, decode, 1024, 8192, 8, lambda k: epi_store_bf16(k, 8192))


def gen_attn(k):
    name = "attn_kernel"
    KA, VA, QF, S0, S1, PR, OA, FR = 16, 24, 32, 64, 96, 128, 144, 208
    VM, VL, VT0, VT1, VT2, VT3 = 240, 241, 243, 244, 245, 246
    kernel_begin(k, name)
    k(f"""
    s_cmp_ge_u32 s2, 512
    s_cbranch_scc1 L_{name}_done
    s_load_dwordx2 s[40:41], s[0:1], {D_WS*8}
    s_and_b32 s16, s2, 7
    s_lshr_b32 s17, s2, 3
    s_and_b32 s17, s17, 3
    s_lshl_b32 s17, s17, 3
    s_add_u32 s16, s16, s17            ; head
    s_lshr_b32 s17, s2, 5
    s_sub_u32 s17, 15, s17
    s_mov_b32 s62, 1
    s_lshl_b32 s20, s16, 8
    s_waitcnt lgkmcnt(0)
    s_add_u32 s42, s40, {WS_Q}
    s_addc_u32 s43, s41, 0
    s_add_u32 s42, s42, s20
    s_addc_u32 s43, s43, 0
    """)
    srd(k, 4, 42, 43, 2048 * 8192)
    k(f"""
    s_add_u32 s42, s40, {WS_K}
    s_addc_u32 s43, s41, 0
    s_add_u32 s42, s42, s20
    s_addc_u32 s43, s43, 0
    """)
    srd(k, 8, 42, 43, 2048 * 8192)
    k(f"""
    s_add_u32 s42, s40, {WS_V}
    s_addc_u32 s43, s41, 0
    s_add_u32 s42, s42, s20
    s_addc_u32 s43, s43, 0
    """)
    srd(k, 12, 42, 43, 2048 * 8192)
    k(f"""
    s_add_u32 s42, s40, {WS_CTX}
    s_addc_u32 s43, s41, 0
    s_add_u32 s42, s42, s20
    s_addc_u32 s43, s43, 0
    """)
    srd(k, 44, 42, 43, 2048 * 8192)
    k.label(f"L_{name}_blk")
    k("""
    s_lshl_b32 s18, s17, 7             ; q0
    s_add_u32 s19, s17, 1
    s_lshl_b32 s19, s19, 1             ; nkt
    """)
    k(f"""
    v_and_b32 v1, 63, v0                  ; lane
    v_lshrrev_b32 v2, 6, v0               ; wave
    v_and_b32 v3, 31, v1                  ; l&31
    v_lshrrev_b32 v4, 5, v1               ; h
    v_lshl_add_u32 v5, v2, 5, v3          ; 32w + (l&31)
    v_add_u32 v5, s18, v5
    v_lshlrev_b32 v6, 13, v5              ; query*8192
    v_lshl_add_u32 v6, v4, 4, v6
    """)
    for s in range(8):
        k(f"buffer_load_dwordx4 v[{QF+4*s}:{QF+4*s+3}], v6, s[4:7], 0 offen offset:{s*32}")
    k(f"""
    s_nop 1
    v_readfirstlane_b32 s50, v2
    v_lshrrev_b32 v7, 4, v1               ; lane>>4
    v_and_b32 v8, 15, v1
    v_lshlrev_b32 v9, 13, v7              ; row*8192
    v_lshl_add_u32 v12, v2, 2, v7
    v_and_b32 v12, 15, v12
    v_xor_b32 v12, v12, v8
    v_lshl_add_u32 v10, v12, 4, v9
    v_lshlrev_b32 v12, 2, v7
    v_xor_b32 v12, v12, v8
    v_lshl_add_u32 v11, v12, 4, v9
    s_lshl_b32 s53, s50, 10
    s_lshl_b32 s51, s50, 15
    """)
    k(f"""
    v_and_b32 v12, 15, v1
    v_lshlrev_b32 v13, 8, v3
    """)
    for s in range(8):
        k(f"""
        v_add_u32 v14, {2*s}, v4
        v_xor_b32 v14, v14, v12
        v_lshl_add_u32 v{KA+s}, v14, 4, v13
        """)
    k(f"""
    v_and_b32 v12, 15, v1                 ; c
    v_lshrrev_b32 v13, 2, v12             ; r
    v_and_b32 v12, 3, v12                 ; col4
    v_lshrrev_b32 v14, 4, v1              ; g
    v_lshrrev_b32 v15, 1, v14             ; h
    v_lshl_add_u32 v15, v15, 2, v13       ; 4h + r
    v_lshlrev_b32 v15, 8, v15             ; *256
    v_and_b32 v14, 1, v14
    v_lshlrev_b32 v14, 1, v14
    v_lshrrev_b32 v7, 1, v12
    v_add_u32 v14, v14, v7                ; 2*(g&1) + (col4>>1)
    v_and_b32 v12, 1, v12
    v_lshl_add_u32 v15, v12, 3, v15       ; + (col4&1)*8
    v_add_u32 v15, 16384, v15
    v_lshlrev_b32 v13, 2, v13             ; r<<2
    """)
    for t in range(4):
        k(f"""
        v_add_u32 v7, {4*t}, v14
        v_xor_b32 v7, v7, v13
        v_lshl_add_u32 v{VA+t}, v7, 4, v15
        """)
    k(f"v_mov_b32 v{VM}, 0xff800000")
    k(f"v_mov_b32 v{VL}, 0")
    for i in range(64):
        k(f"v_mov_b32 v{OA+i}, 0")
    k("s_mov_b32 s24, s51")
    k("s_mov_b32 s25, s51")

    def dma(which, b):
        base, sreg, voff, srdr = (0, 24, 10, 8) if which == "K" else (16384, 25, 11, 12)
        for j in range(4):
            k(f"s_add_u32 m0, s53, {b*32768+base+j*4096}")
            k(f"s_add_u32 s26, s{sreg}, {j*16*8192}")
            k(f"buffer_load_dwordx4 v{voff}, s[{srdr}:{srdr+3}], s26 offen lds")
        k(f"s_add_u32 s{sreg}, s{sreg}, {64*8192}")

    def qk_ops(kb, S):
        ops = []
        for a in range(2):
            for s_ in range(8):
                slot = FR + 4 * ((a * 8 + s_) % 8)
                rd = [f"ds_read_b128 v[{slot}:{slot+3}], v{KA+s_} offset:{kb*32768+a*8192}"]
                c = "0" if s_ == 0 else f"v[{S+16*a}:{S+16*a+15}]"
                mf = (f"v_mfma_f32_32x32x16_bf16 v[{S+16*a}:{S+16*a+15}], v[{slot}:{slot+3}], "
                      f"v[{QF+4*s_}:{QF+4*s_+3}], {c}")
                ops.append((rd, mf))
        return ops

    def pv_ops(vb):
        ops = []
        for t in range(4):
            for j in range(4):
                slot = FR + 4 * ((t * 4 + j) % 8)
                rd = [f"ds_read_b64_tr_b16 v[{slot+2*u}:{slot+2*u+1}], v{VA+t} offset:{vb*32768+j*4096+u*2048}"
                      for u in range(2)]
                mf = (f"v_mfma_f32_32x32x16_bf16 v[{OA+16*t}:{OA+16*t+15}], v[{slot}:{slot+3}], "
                      f"v[{PR+4*j}:{PR+4*j+3}], v[{OA+16*t}:{OA+16*t+15}]")
                ops.append((rd, mf))
        return ops

    def emit_merged(ops, valu, lead=0, ahead=4):
        q = []
        for l in valu[:lead]:
            k(l)
        rest = valu[lead:]
        n = len(ops)
        for i in range(min(ahead, n)):
            for r in ops[i][0]:
                k(r); q.append(i)
        per = [len(rest) * (i + 1) // n - len(rest) * i // n for i in range(n)]
        vi = 0
        for i in range(n):
            if i + ahead < n:
                for r in ops[i + ahead][0]:
                    k(r); q.append(i + ahead)
            pend = len([x for x in q if x > i])
            k(f"s_waitcnt lgkmcnt({pend})")
            q = [x for x in q if x > i]
            k(ops[i][1])
            for _ in range(per[i]):
                k(rest[vi]); vi += 1

    def round_valu(S):
        v = []
        for i in range(16):
            a_, b_ = S + 2 * i, S + 2 * i + 1
            v += [f"v_cvt_pk_bf16_f32 v{a_}, v{a_}, v{b_}",
                  f"v_and_b32 v{b_}, 0xffff0000, v{a_}",
                  f"v_lshlrev_b32 v{a_}, 16, v{a_}",
                  f"v_mul_f32 v{a_}, s30, v{a_}",
                  f"v_mul_f32 v{b_}, s30, v{b_}",
                  f"v_cvt_pk_bf16_f32 v{a_}, v{a_}, v{b_}",
                  f"v_and_b32 v{b_}, 0xffff0000, v{a_}",
                  f"v_lshlrev_b32 v{a_}, 16, v{a_}"]
        return v

    def mask(S, lab):
        k(f"""
        s_add_u32 s26, s21, 63
        s_cmp_le_u32 s26, s18
        s_cbranch_scc1 {lab}
        v_lshlrev_b32 v{VT1}, 2, v4
        v_add_u32 v{VT1}, s21, v{VT1}
        """)
        for a in range(2):
            for r in range(16):
                off = a * 32 + 8 * (r >> 2) + (r & 3)
                k(f"v_add_u32 v{VT2}, {off}, v{VT1}")
                k(f"v_cmp_gt_u32 vcc, v{VT2}, v5")
                k(f"v_cndmask_b32 v{S+16*a+r}, v{S+16*a+r}, v{VT3}, vcc")
        k.label(lab)

    def softmax_valu(S):
        v = [f"v_max3_f32 v{VT0}, v{S}, v{S+1}, v{S+2}"]
        for i in range(3, 31, 2):
            v.append(f"v_max3_f32 v{VT0}, v{VT0}, v{S+i}, v{S+i+1}")
        v += [f"v_max_f32 v{VT0}, v{VT0}, v{S+31}", f"v_mov_b32 v{VT1}, v{VT0}", "s_nop 1",
              f"v_permlane32_swap_b32 v{VT1}, v{VT0}", "s_nop 1",
              f"v_max3_f32 v{VT0}, v{VT0}, v{VT1}, v{VM}",
              f"v_sub_f32 v{VT1}, v{VM}, v{VT0}", f"v_mul_f32 v{VT1}, s31, v{VT1}",
              f"v_exp_f32 v{VT1}, v{VT1}", f"v_mov_b32 v{VM}, v{VT0}", f"v_mul_f32 v{VT2}, s31, v{VT0}"]
        for i in range(32):
            v.append(f"v_fma_f32 v{S+i}, v{S+i}, s31, -v{VT2}")
            v.append(f"v_exp_f32 v{S+i}, v{S+i}")
        v.append(f"v_mul_f32 v{VL}, v{VL}, v{VT1}")
        for i in range(16):
            v.append(f"v_add_f32 v{VL}, v{VL}, v{S+2*i}")
            v.append(f"v_add_f32 v{VL}, v{VL}, v{S+2*i+1}")
            v.append(f"v_cvt_pk_bf16_f32 v{PR+i}, v{S+2*i}, v{S+2*i+1}")
        for i in range(64):
            v.append(f"v_mul_f32 v{OA+i}, v{OA+i}, v{VT1}")
        return v

    k("s_mov_b32 s30, 0x3db504f3")
    k("s_mov_b32 s31, 0x3fb8aa3b")
    k(f"v_mov_b32 v{VT3}, 0xf149f2ca")
    dma("K", 0); dma("V", 0); dma("K", 1)
    k("s_waitcnt vmcnt(0)")
    k("s_barrier")
    emit_merged(qk_ops(0, S0), [])
    k("s_nop 7"); k("s_nop 7")
    for l in round_valu(S0):
        k(l)
    k("s_mov_b32 s21, 0")
    mask(S0, f"L_{name}_nm_p")
    k("s_mov_b32 s22, s19")
    k("s_barrier")
    k.label(f"L_{name}_loop")
    for b in range(2):
        Sc, Sn = (S0, S1) if b == 0 else (S1, S0)
        dma("K", b)
        dma("V", b ^ 1)
        emit_merged(qk_ops(b ^ 1, Sn), softmax_valu(Sc), lead=20)
        k("s_nop 1")
        emit_merged(pv_ops(b), round_valu(Sn))
        k("s_add_u32 s21, s21, 64")
        mask(Sn, f"L_{name}_nm{b}")
        k("s_waitcnt vmcnt(0) lgkmcnt(0)")
        k("s_barrier")
    k("s_sub_u32 s22, s22, 2")
    k("s_cmp_lg_u32 s22, 0")
    k(f"s_cbranch_scc1 L_{name}_loop")
    k("s_nop 7"); k("s_nop 7")
    k(f"""
    v_mov_b32 v{VT1}, v{VL}
    s_nop 1
    v_permlane32_swap_b32 v{VT1}, v{VL}
    s_nop 1
    v_add_f32 v{VL}, v{VL}, v{VT1}
    v_rcp_f32 v{VT0}, v{VL}
    s_nop 7
    s_nop 7
    v_fma_f32 v{VT1}, -v{VT0}, v{VL}, 1.0
    v_fmac_f32 v{VT0}, v{VT1}, v{VT0}
    v_lshlrev_b32 v6, 13, v5
    v_lshl_add_u32 v6, v4, 3, v6          ; query*8192 + h*8
    """)
    for t in range(4):
        for g in range(4):
            a = OA + 16 * t + 4 * g
            for i in range(4):
                k(f"v_mul_f32 v{a+i}, v{a+i}, v{VT0}")
            k(f"v_cvt_pk_bf16_f32 v{VT1}, v{a}, v{a+1}")
            k(f"v_cvt_pk_bf16_f32 v{VT2}, v{a+2}, v{a+3}")
            k(f"buffer_store_dwordx2 v[{VT1}:{VT2}], v6, s[44:47], 0 offen offset:{t*64+g*16}")
            k("s_nop 1")
    k("""
    s_mov_b32 s17, s61
    s_sub_u32 s62, s62, 1
    s_cmp_lg_u32 s62, 0
    """)
    k(f"s_cbranch_scc1 L_{name}_blk")
    k.label(f"L_{name}_done")
    kernel_end(k, name, 248)


def epi_store_f32(k, ldc):
    epi_lane_coords(k)
    k(f"""
    v_lshl_add_u32 v3, v7, 6, v1
    v_mul_u32_u24 v3, {ldc}, v3
    v_lshlrev_b32 v4, 4, v2               ; h*4*4 bytes
    v_lshl_add_u32 v4, v8, 8, v4          ; + wn*64*4
    v_add_u32 v3, v3, v4
    s_mov_b32 s23, {32*ldc}
    """)
    for i_n in range(2):
        for i_m in range(2):
            for g in range(4):
                a = GV['ACC'] + 16 * (2 * i_n + i_m) + 4 * g
                so = "s23" if i_m else "0"
                k(f"buffer_store_dwordx4 v[{a}:{a+3}], v3, s[12:15], {so} offen offset:{i_n*128+g*32}")


def gen_oproj(k):
    def decode(k):
        k(f"""
        s_load_dwordx2 s[32:33], s[0:1], {A_WO*8}
        s_load_dwordx2 s[40:41], s[0:1], {D_WS*8}
        s_and_b32 s16, s2, 3              ; nt
        s_lshr_b32 s17, s2, 2
        s_and_b32 s17, s17, 15            ; mt
        s_lshr_b32 s18, s2, 6             ; ks
        s_waitcnt lgkmcnt(0)
        s_add_u32 s44, s40, {WS_CTX}
        s_addc_u32 s45, s41, 0
        s_lshl_b32 s19, s17, 20           ; mt*128*8192
        s_lshl_b32 s20, s18, 11           ; ks*1024*2
        s_add_u32 s19, s19, s20
        s_add_u32 s44, s44, s19
        s_addc_u32 s45, s45, 0
        """)
        srd(k, 4, 44, 45, 128 * 8192 - 0)
        k(f"""
        s_lshl_b32 s19, s16, 8            ; n0*2
        s_lshl_b32 s20, s18, 20           ; ks*1024*1024
        s_add_u32 s19, s19, s20
        s_add_u32 s46, s32, s19
        s_addc_u32 s47, s33, 0
        s_sub_u32 s20, {4096*1024}, s19
        """)
        srd(k, 8, 46, 47, "s20")
        k(f"""
        s_lshl_b32 s20, s18, 22           ; ks*2048*2048
        s_add_u32 s20, s20, {WS_PART}
        s_lshl_b32 s21, s17, 18           ; mt*128*2048
        s_add_u32 s20, s20, s21
        s_lshl_b32 s21, s16, 9            ; n0*4
        s_add_u32 s20, s20, s21
        s_add_u32 s44, s40, s20
        s_addc_u32 s45, s41, 0
        """)
        srd(k, 12, 44, 45, 128 * 2048)

    gemm_kernel(k, "oproj_kernel", 256, decode, 8192, 1024, 16, lambda k: epi_store_f32(k, 2048))


def load_bias(k, i_n, g):
    k(f"buffer_load_dwordx2 v[18:19], v15, s[56:59], 0 offen offset:{i_n*64+g*16}")


def gen_ffn1(k):
    def decode(k):
        k(f"""
        s_load_dwordx4 s[32:35], s[0:1], {B_W1*8}
        s_load_dwordx2 s[40:41], s[0:1], {D_WS*8}
        s_and_b32 s17, s2, 15             ; mt
        s_lshr_b32 s16, s2, 4             ; nt
        s_waitcnt lgkmcnt(0)
        s_add_u32 s44, s40, {WS_HLN}
        s_addc_u32 s45, s41, 0
        s_lshl_b32 s19, s17, 17           ; mt*128*1024
        s_add_u32 s44, s44, s19
        s_addc_u32 s45, s45, 0
        """)
        srd(k, 4, 44, 45, 128 * 1024)
        k(f"""
        s_lshl_b32 s19, s16, 8            ; n0*2
        s_add_u32 s46, s32, s19
        s_addc_u32 s47, s33, 0
        s_sub_u32 s20, {512*2752}, s19
        """)
        srd(k, 8, 46, 47, "s20")
        k(f"""
        s_add_u32 s46, s34, s19
        s_addc_u32 s47, s35, 0
        s_sub_u32 s20, {1376*2}, s19
        """)
        srd(k, 56, 46, 47, "s20")
        k(f"""
        s_mul_i32 s20, s17, {128*H1_PITCH*2}
        s_add_u32 s20, s20, {WS_H1}
        s_add_u32 s20, s20, s19
        s_add_u32 s44, s40, s20
        s_addc_u32 s45, s41, 0
        """)
        srd(k, 12, 44, 45, 128 * H1_PITCH * 2)

    def pre(k, i_n, i_m, g, a):
        load_bias(k, i_n, g)
        k("s_waitcnt vmcnt(0)")
        k(f"v_cvt_pk_bf16_f32 v20, v{a}, v{a+1}")
        k(f"v_cvt_pk_bf16_f32 v21, v{a+2}, v{a+3}")
        for i in range(4):
            src = 20 + (i >> 1)
            bsrc = 18 + (i >> 1)
            if i & 1:
                k(f"v_and_b32 v{22+i}, 0xffff0000, v{src}")
                k(f"v_and_b32 v{26+i}, 0xffff0000, v{bsrc}")
            else:
                k(f"v_lshlrev_b32 v{22+i}, 16, v{src}")
                k(f"v_lshlrev_b32 v{26+i}, 16, v{bsrc}")
        for i in range(4):
            k(f"v_add_f32 v{22+i}, v{22+i}, v{26+i}")
        k("v_cvt_pk_bf16_f32 v20, v22, v23")
        k("v_cvt_pk_bf16_f32 v21, v24, v25")
        for i in range(4):
            src = 20 + (i >> 1)
            if i & 1:
                k(f"v_and_b32 v{22+i}, 0xffff0000, v{src}")
            else:
                k(f"v_lshlrev_b32 v{22+i}, 16, v{src}")
        for i in range(4):
            k(f"v_mul_f32 v{26+i}, v{22+i}, v{22+i}")
            k(f"v_fma_f32 v{26+i}, v{26+i}, s36, v31")
            k(f"v_mul_f32 v{26+i}, v{26+i}, v{22+i}")
            k(f"v_exp_f32 v{26+i}, v{26+i}")
        k("s_nop 0")
        for i in range(4):
            k(f"v_add_f32 v{26+i}, 1.0, v{26+i}")
            k(f"v_rcp_f32 v{26+i}, v{26+i}")
        k("s_nop 0")
        for i in range(4):
            k(f"v_mul_f32 v{26+i}, v{26+i}, v{22+i}")
            k(f"v_sub_f32 v{a+i}, v{22+i}, v{26+i}")

    def epi(k):
        import math
        c0 = 2.0 * math.log2(math.e) * math.sqrt(2.0 / math.pi)
        c1 = c0 * 0.044715
        import struct
        f = lambda x: struct.unpack("<I", struct.pack("<f", x))[0]
        k(f"s_mov_b32 s36, {f(c1):#x}")
        k(f"v_mov_b32 v31, {f(c0):#x}")
        epi_lane_coords(k)
        k("""
        v_lshlrev_b32 v15, 3, v2
        v_lshl_add_u32 v15, v8, 7, v15
        """)
        epi_store_bf16(k, H1_PITCH * 2, pre)

    gemm_kernel(k, "ffn1_kernel", 176, decode, 1024, 2752, 8, epi)


def gen_ffn2(k):
    def decode(k):
        k(f"""
        s_load_dwordx4 s[32:35], s[0:1], {B_W2*8}
        s_load_dwordx2 s[40:41], s[0:1], {D_WS*8}
        s_load_dwordx2 s[48:49], s[0:1], {D_OUT*8}
        s_and_b32 s16, s2, 3              ; nt
        s_lshr_b32 s17, s2, 2             ; mt
        s_waitcnt lgkmcnt(0)
        s_mul_i32 s19, s17, {128*H1_PITCH*2}
        s_add_u32 s19, s19, {WS_H1}
        s_add_u32 s44, s40, s19
        s_addc_u32 s45, s41, 0
        """)
        srd(k, 4, 44, 45, 128 * H1_PITCH * 2)
        k(f"""
        s_lshl_b32 s19, s16, 8            ; n0*2
        s_add_u32 s46, s32, s19
        s_addc_u32 s47, s33, 0
        s_sub_u32 s20, {1376*1024}, s19
        """)
        srd(k, 8, 46, 47, "s20")
        k(f"""
        s_add_u32 s46, s34, s19
        s_addc_u32 s47, s35, 0
        """)
        srd(k, 56, 46, 47, 256)
        k(f"""
        s_lshl_b32 s20, s17, 17
        s_add_u32 s20, s20, s19
        s_add_u32 s44, s48, s20
        s_addc_u32 s45, s49, 0
        """)
        srd(k, 12, 44, 45, 128 * 1024)
        k(f"""
        s_add_u32 s20, s20, {WS_H}
        s_add_u32 s44, s40, s20
        s_addc_u32 s45, s41, 0
        """)
        srd(k, 64, 44, 45, 128 * 1024)

    def pre(k, i_n, i_m, g, a):
        load_bias(k, i_n, g)
        so = "s60" if i_m else "0"
        k(f"buffer_load_dwordx2 v[30:31], v14, s[64:67], {so} offen offset:{i_n*64+g*16}")
        k("s_waitcnt vmcnt(0)")
        k(f"v_cvt_pk_bf16_f32 v20, v{a}, v{a+1}")
        k(f"v_cvt_pk_bf16_f32 v21, v{a+2}, v{a+3}")
        for i in range(4):
            src = 20 + (i >> 1)
            bsrc = 18 + (i >> 1)
            if i & 1:
                k(f"v_and_b32 v{22+i}, 0xffff0000, v{src}")
                k(f"v_and_b32 v{26+i}, 0xffff0000, v{bsrc}")
            else:
                k(f"v_lshlrev_b32 v{22+i}, 16, v{src}")
                k(f"v_lshlrev_b32 v{26+i}, 16, v{bsrc}")
        for i in range(4):
            k(f"v_add_f32 v{22+i}, v{22+i}, v{26+i}")
        k("v_cvt_pk_bf16_f32 v20, v22, v23")
        k("v_cvt_pk_bf16_f32 v21, v24, v25")
        for i in range(4):
            src = 20 + (i >> 1)
            hsrc = 30 + (i >> 1)
            if i & 1:
                k(f"v_and_b32 v{22+i}, 0xffff0000, v{src}")
                k(f"v_and_b32 v{26+i}, 0xffff0000, v{hsrc}")
            else:
                k(f"v_lshlrev_b32 v{22+i}, 16, v{src}")
                k(f"v_lshlrev_b32 v{26+i}, 16, v{hsrc}")
        for i in range(4):
            k(f"v_add_f32 v{a+i}, v{22+i}, v{26+i}")

    def epi(k):
        epi_lane_coords(k)
        k("""
        v_lshlrev_b32 v15, 3, v2
        v_lshl_add_u32 v15, v8, 7, v15
        v_lshl_add_u32 v14, v7, 6, v1
        v_lshl_add_u32 v14, v14, 10, v15
        s_mov_b32 s60, 32768
        """)
        epi_store_bf16(k, 1024, pre)

    gemm_kernel(k, "ffn2_kernel", 64, decode, H1_PITCH * 2, 1024, 22, epi)


def main():
    k = Asm()
    hdr = open(OUT + ".ref").read().split("; Override launch")[0]
    k.raw(hdr.rstrip("\n"))
    k.raw("; @launch kernel=ln1_kernel grid=(512,1,1) block=(256,1,1) lds=0")
    k.raw("; @launch kernel=qkv_kernel grid=(1536,1,1) block=(256,1,1) lds=65536")
    k.raw("; @launch kernel=attn_kernel grid=(512,1,1) block=(256,1,1) lds=65536")
    k.raw("; @launch kernel=oproj_kernel grid=(256,1,1) block=(256,1,1) lds=65536")
    k.raw("; @launch kernel=ln2_kernel grid=(512,1,1) block=(256,1,1) lds=0")
    k.raw("; @launch kernel=ffn1_kernel grid=(176,1,1) block=(256,1,1) lds=65536")
    k.raw("; @launch kernel=ffn2_kernel grid=(64,1,1) block=(256,1,1) lds=65536")
    k.raw('.amdgcn_target "amdgcn-amd-amdhsa--gfx950"')
    ln_kernel(k, "ln1_kernel", 1)
    gen_qkv(k)
    gen_attn(k)
    gen_oproj(k)
    ln_kernel(k, "ln2_kernel", 2)
    gen_ffn1(k)
    gen_ffn2(k)
    open(OUT, "w").write(k.text())


if __name__ == "__main__":
    main()
```

```python
import sys

NAME = "sequential_preLN__compressed_kv_cla__dense_activation_gelu__prompt"
OUT = "cdna_kernels/" + NAME + ".s"

WS_XLN, WS_Q, WS_K, WS_V, WS_CTX, WS_PART, WS_H, WS_HLN, WS_H1 = (
    0, 0x200000, 0x1200000, 0x2200000, 0x3200000, 0x4200000, 0x5200000, 0x5400000, 0x5600000)
H1_PITCH = 1408

A_X, A_CKV, A_WQ, A_WUK, A_WUV, A_WO, B_X, B_W1, B_B1, B_W2, B_B2, D_OUT, D_DBG, D_WS = range(14)


class Asm:
    def __init__(self):
        self.l = []

    def __call__(self, s):
        for line in s.strip("\n").split("\n"):
            self.l.append("  " + line.strip())

    def label(self, s):
        self.l.append(s + ":")

    def raw(self, s):
        self.l.append(s)

    def text(self):
        return "\n".join(self.l) + "\n"


def kernel_begin(k, name):
    k.raw(".text")
    k.raw(f".globl {name}")
    k.raw(".p2align 8")
    k.raw(f".type {name},@function")
    k.label(name)


def kernel_end(k, name, vgpr, sgpr=96, agpr=0):
    k("s_endpgm")
    acc = (vgpr + 3) // 4 * 4
    k.raw('.section .rodata,"a"')
    k.raw(".p2align 6")
    k.raw(f".amdhsa_kernel {name}")
    k.raw(f"  .amdhsa_next_free_vgpr {acc + agpr}")
    k.raw(f"  .amdhsa_next_free_sgpr {sgpr}")
    k.raw(f"  .amdhsa_accum_offset {acc}")
    k.raw("  .amdhsa_group_segment_fixed_size 0")
    k.raw("  .amdhsa_kernarg_size 112")
    k.raw("  .amdhsa_user_sgpr_count 2")
    k.raw("  .amdhsa_user_sgpr_kernarg_segment_ptr 1")
    k.raw("  .amdhsa_system_sgpr_workgroup_id_x 1")
    k.raw(".end_amdhsa_kernel")


def srd(k, d, lo, hi, nbytes):
    k(f"s_mov_b32 s{d}, s{lo}")
    k(f"s_and_b32 s{d+1}, s{hi}, 0xffff")
    k(f"s_mov_b32 s{d+2}, {nbytes}")
    k(f"s_mov_b32 s{d+3}, 0x00020000")


def wave_allreduce_add(k, v, tmp):
    for off in (0x041F, 0x081F, 0x101F, 0x201F, 0x401F):
        k(f"ds_swizzle_b32 v{tmp}, v{v} offset:{off:#x}")
        k("s_waitcnt lgkmcnt(0)")
        k(f"v_add_f32 v{v}, v{v}, v{tmp}")
    k(f"v_mov_b32 v{tmp}, v{v}")
    k("s_nop 1")
    k(f"v_permlane32_swap_b32 v{tmp}, v{v}")
    k("s_nop 1")
    k(f"v_add_f32 v{v}, v{v}, v{tmp}")


def ln_kernel(k, name, mode):
    kernel_begin(k, name)
    k("s_cmp_ge_u32 s2, 512")
    k("s_cbranch_scc1 L_%s_done" % name)
    k(f"s_load_dwordx2 s[4:5], s[0:1], {A_X*8}")
    k(f"s_load_dwordx2 s[6:7], s[0:1], {D_WS*8}")
    k("v_lshrrev_b32 v1, 6, v0")
    k("v_and_b32 v2, 63, v0")
    k("s_lshl_b32 s3, s2, 2")
    k("v_add_u32 v1, s3, v1")
    k("v_lshlrev_b32 v3, 10, v1")
    k("v_lshl_add_u32 v3, v2, 4, v3")
    k("s_waitcnt lgkmcnt(0)")
    srd(k, 8, 4, 5, 2048 * 1024)
    if mode == 1:
        k(f"s_add_u32 s20, s6, {WS_XLN}")
        k("s_addc_u32 s21, s7, 0")
        srd(k, 12, 20, 21, 2048 * 1024)
    else:
        k(f"s_add_u32 s20, s6, {WS_HLN}")
        k("s_addc_u32 s21, s7, 0")
        srd(k, 12, 20, 21, 2048 * 1024)
        k(f"s_add_u32 s20, s6, {WS_H}")
        k("s_addc_u32 s21, s7, 0")
        srd(k, 16, 20, 21, 2048 * 1024)
        k(f"s_add_u32 s20, s6, {WS_PART}")
        k("s_addc_u32 s21, s7, 0")
        srd(k, 24, 20, 21, 4 * 2048 * 2048)
    k("buffer_load_dwordx4 v[4:7], v3, s[8:11], 0 offen")
    if mode == 2:
        k("v_lshlrev_b32 v8, 11, v1")
        k("v_lshl_add_u32 v8, v2, 5, v8")
        for p in range(4):
            k(f"s_mov_b32 s28, {p * 2048 * 2048}")
            k(f"buffer_load_dwordx4 v[{40+8*p}:{43+8*p}], v8, s[24:27], s28 offen")
            k(f"buffer_load_dwordx4 v[{44+8*p}:{47+8*p}], v8, s[24:27], s28 offen offset:16")
    k("s_waitcnt vmcnt(0)")
    for i in range(4):
        k(f"v_lshlrev_b32 v{10+2*i}, 16, v{4+i}")
        k(f"v_and_b32 v{11+2*i}, 0xffff0000, v{4+i}")
    if mode == 2:
        for i in range(8):
            k(f"v_add_f32 v{40+i}, v{40+i}, v{48+i}")
            k(f"v_add_f32 v{56+i}, v{56+i}, v{64+i}")
        for i in range(8):
            k(f"v_add_f32 v{40+i}, v{40+i}, v{56+i}")
        for i in range(4):
            k(f"v_cvt_pk_bf16_f32 v{48+i}, v{40+2*i}, v{41+2*i}")
        for i in range(4):
            k(f"v_lshlrev_b32 v{40+2*i}, 16, v{48+i}")
            k(f"v_and_b32 v{41+2*i}, 0xffff0000, v{48+i}")
        for i in range(8):
            k(f"v_add_f32 v{10+i}, v{10+i}, v{40+i}")
        for i in range(4):
            k(f"v_cvt_pk_bf16_f32 v{4+i}, v{10+2*i}, v{11+2*i}")
        for i in range(4):
            k(f"v_lshlrev_b32 v{10+2*i}, 16, v{4+i}")
            k(f"v_and_b32 v{11+2*i}, 0xffff0000, v{4+i}")
        k("buffer_store_dwordx4 v[4:7], v3, s[16:19], 0 offen")
    k("v_add_f32 v20, v10, v11")
    for i in range(2, 8):
        k(f"v_add_f32 v20, v20, v{10+i}")
    wave_allreduce_add(k, 20, 21)
    k("v_mul_f32 v20, 0x3b000000, v20")
    for i in range(8):
        k(f"v_sub_f32 v{24+i}, v{10+i}, v20")
    k("v_mul_f32 v22, v24, v24")
    for i in range(1, 8):
        k(f"v_fmac_f32 v22, v{24+i}, v{24+i}")
    wave_allreduce_add(k, 22, 21)
    k("v_mul_f32 v22, 0x3b000000, v22")
    k("v_cvt_pk_bf16_f32 v23, v20, v22")
    k("v_lshlrev_b32 v20, 16, v23")
    k("v_and_b32 v22, 0xffff0000, v23")
    k("v_add_f32 v22, 0x3727c5ac, v22")
    k("v_cvt_pk_bf16_f32 v22, v22, v22")
    k("v_lshlrev_b32 v22, 16, v22")
    k("v_sqrt_f32 v22, v22")
    k("s_nop 1")
    k("v_cvt_pk_bf16_f32 v22, v22, v22")
    k("v_lshlrev_b32 v22, 16, v22")
    k("v_rcp_f32 v23, v22")
    k("s_nop 1")
    for i in range(8):
        k(f"v_sub_f32 v{24+i}, v{10+i}, v20")
    for i in range(4):
        k(f"v_cvt_pk_bf16_f32 v{32+i}, v{24+2*i}, v{25+2*i}")
    for i in range(4):
        k(f"v_lshlrev_b32 v{24+2*i}, 16, v{32+i}")
        k(f"v_and_b32 v{25+2*i}, 0xffff0000, v{32+i}")
    for i in range(8):
        k(f"v_mul_f32 v{32+i}, v{24+i}, v23")
    for i in range(8):
        k(f"v_fma_f32 v{10+i}, -v{32+i}, v22, v{24+i}")
    for i in range(8):
        k(f"v_fmac_f32 v{32+i}, v{10+i}, v23")
    for i in range(4):
        k(f"v_cvt_pk_bf16_f32 v{4+i}, v{32+2*i}, v{33+2*i}")
    k("buffer_store_dwordx4 v[4:7], v3, s[12:15], 0 offen")
    k.label("L_%s_done" % name)
    kernel_end(k, name, 72)


GV = dict(STA=16, STW=32, F0A=48, F0W=56, F1A=64, F1W=72, ACC=80)


def gemm_kernel(k, name, nwg, decode, lda, ldw, nt, epilogue, vgpr=152, NS=2):
    assert nt % NS == 0
    kernel_begin(k, name)
    k(f"s_cmp_ge_u32 s2, {nwg}")
    k(f"s_cbranch_scc1 L_{name}_done")
    decode(k)
    k(f"""
    v_and_b32 v1, 63, v0
    v_lshrrev_b32 v2, 6, v0               ; wave
    s_nop 1
    v_readfirstlane_b32 s50, v2
    v_lshrrev_b32 v5, 3, v1               ; lane>>3
    v_and_b32 v6, 7, v1
    v_lshrrev_b32 v7, 4, v1               ; lane>>4
    v_and_b32 v8, 1, v2
    v_lshl_add_u32 v8, v8, 2, v7          ; (lane>>4) + 4*(w&1)
    v_xor_b32 v6, v6, v8
    v_mul_u32_u24 v3, {lda}, v5
    v_lshl_add_u32 v3, v6, 4, v3
    v_and_b32 v6, 15, v1
    v_lshlrev_b32 v8, 2, v7
    v_xor_b32 v6, v6, v8
    v_mul_u32_u24 v4, {ldw}, v7
    v_lshl_add_u32 v4, v6, 4, v4
    """)
    k("""
    v_and_b32 v1, 63, v0
    v_lshrrev_b32 v2, 6, v0
    v_lshrrev_b32 v7, 1, v2               ; wm
    v_and_b32 v2, 1, v2                   ; wn
    v_and_b32 v8, 31, v1
    v_lshl_add_u32 v8, v7, 6, v8
    v_lshlrev_b32 v8, 7, v8               ; row*128
    v_lshrrev_b32 v9, 1, v1
    v_and_b32 v9, 7, v9                   ; x = (l>>1)&7
    v_lshrrev_b32 v10, 5, v1              ; h
    """)
    for s in range(4):
        k(f"""
        v_add_u32 v11, {2*s}, v10
        v_xor_b32 v11, v11, v9
        v_lshl_add_u32 v{12+s}, v11, 4, v8
        """)
    k("""
    v_and_b32 v8, 15, v1                  ; c
    v_lshrrev_b32 v9, 2, v8               ; r
    v_and_b32 v8, 3, v8                   ; col4
    v_lshrrev_b32 v7, 4, v1               ; g
    v_lshrrev_b32 v10, 1, v7              ; g>>1
    v_lshlrev_b32 v10, 3, v10             ; 8*(g>>1)
    v_add_u32 v10, v10, v9
    v_lshlrev_b32 v10, 8, v10             ; *256
    v_and_b32 v7, 1, v7                   ; g&1
    v_lshlrev_b32 v7, 1, v7               ; 2*(g&1)
    v_lshrrev_b32 v11, 1, v8              ; col4>>1
    v_add_u32 v7, v7, v11                 ; 2*(g&1) + (col4>>1)
    v_lshl_add_u32 v7, v2, 3, v7
    v_lshlrev_b32 v9, 2, v9               ; r<<2
    v_and_b32 v8, 1, v8
    v_lshlrev_b32 v8, 3, v8               ; (col4&1)*8
    v_add_u32 v10, v10, v8
    v_add_u32 v10, 16384, v10
    v_xor_b32 v11, v7, v9
    v_lshl_add_u32 v1, v11, 4, v10        ; addr i_n=0
    v_add_u32 v7, 4, v7
    v_xor_b32 v11, v7, v9
    v_lshl_add_u32 v2, v11, 4, v10        ; addr i_n=1
    v_mov_b32 v10, v1
    v_mov_b32 v11, v2
    """)
    for i in range(4):
        k(f"v_add_u32 v{144+i}, 0x10000, v{12+i}")
    for i in range(2):
        k(f"v_add_u32 v{148+i}, 0x10000, v{10+i}")
    for i in range(64):
        k(f"v_mov_b32 v{GV['ACC']+i}, 0")
    import os
    EXP = os.environ.get("GEXP", "")
    k(f"s_mul_i32 s51, s50, {8*lda}")
    k(f"s_mul_i32 s52, s50, {4*ldw}")
    for j in range(4):
        k(f"s_add_u32 s{24+j}, s51, {j*32*lda}")
        k(f"s_add_u32 s{28+j}, s52, {j*16*ldw}")
    k("s_lshl_b32 s53, s50, 10")

    def gload(b):
        for j in range(4 if "noload" not in EXP else 0):
            k(f"s_add_u32 m0, s53, {b*32768+j*4096}")
            k("s_nop 0")
            k(f"buffer_load_dwordx4 v3, s[4:7], s{24+j} offen lds")
        for j in range(4 if "noload" not in EXP else 0):
            k(f"s_add_u32 m0, s53, {b*32768+16384+j*4096}")
            k("s_nop 0")
            k(f"buffer_load_dwordx4 v4, s[8:11], s{28+j} offen lds")
        for j in range(4):
            k(f"s_add_u32 s{24+j}, s{24+j}, 128")
            k(f"s_add_u32 s{28+j}, s{28+j}, {64*ldw}")

    def fread(b, s, f):
        fa, fw = (GV['F0A'], GV['F0W']) if f == 0 else (GV['F1A'], GV['F1W'])
        hi = b >= 2
        bb = b - 2 if hi else b
        for i in range(2):
            k(f"ds_read_b128 v[{fa+4*i}:{fa+4*i+3}], v{(144 if hi else 12)+s} offset:{bb*32768+i*4096}")
        for i in range(2):
            for u in range(2):
                k(f"ds_read_b64_tr_b16 v[{fw+4*i+2*u}:{fw+4*i+2*u+1}], v{(148 if hi else 10)+i} offset:{bb*32768+s*4096+u*1024}")

    def compute(b):
        fread(b, 0, 0)
        for s in range(4):
            if s < 3:
                fread(b, s + 1, (s + 1) & 1)
                k("s_waitcnt lgkmcnt(6)")
            else:
                k("s_waitcnt lgkmcnt(0)")
            fa, fw = (GV['F0A'], GV['F0W']) if (s & 1) == 0 else (GV['F1A'], GV['F1W'])
            for i_n in range(2):
                for i_m in range(2):
                    acc = GV['ACC'] + 16 * (2 * i_n + i_m)
                    if "nomfma" not in EXP: k(f"v_mfma_f32_32x32x16_bf16 v[{acc}:{acc+15}], v[{fw+4*i_n}:{fw+4*i_n+3}], "
                      f"v[{fa+4*i_m}:{fa+4*i_m+3}], v[{acc}:{acc+15}]")

    for st in range(NS - 1):
        gload(st)
    k(f"s_mov_b32 s22, {nt // NS}")
    k.label(f"L_{name}_loop")
    for st in range(NS):
        k(f"s_waitcnt vmcnt({8*(NS-2)})")
        k("s_barrier")
        gload((st + NS - 1) % NS)
        compute(st)
    k("s_sub_u32 s22, s22, 1")
    k("s_cmp_lg_u32 s22, 0")
    k(f"s_cbranch_scc1 L_{name}_loop")
    k("s_waitcnt vmcnt(0)")
    k("s_barrier")
    k("s_nop 7")
    k("s_nop 7")
    if "noepi" not in EXP: epilogue(k)
    k.label(f"L_{name}_done")
    kernel_end(k, name, vgpr)


def epi_lane_coords(k):
    k("""
    v_and_b32 v9, 63, v0
    v_and_b32 v1, 31, v9
    v_lshrrev_b32 v2, 5, v9
    v_lshrrev_b32 v8, 6, v0
    v_lshrrev_b32 v7, 1, v8
    v_and_b32 v8, 1, v8
    """)


def epi_store_bf16(k, ldc, pre=None):
    epi_lane_coords(k)
    k(f"""
    v_lshl_add_u32 v3, v7, 6, v1
    v_mul_u32_u24 v3, 272, v3
    v_lshlrev_b32 v4, 3, v2               ; h*4*2 bytes
    v_lshl_add_u32 v4, v8, 7, v4          ; + wn*64*2
    v_add_u32 v3, v3, v4
    v_lshrrev_b32 v5, 4, v0
    v_and_b32 v6, 15, v0
    v_mul_u32_u24 v4, 272, v5
    v_lshl_add_u32 v4, v6, 4, v4
    v_mul_u32_u24 v5, {ldc}, v5
    v_lshl_add_u32 v5, v6, 4, v5
    """)
    for i_n in range(2):
        for i_m in range(2):
            for g in range(4):
                a = GV['ACC'] + 16 * (2 * i_n + i_m) + 4 * g
                if pre:
                    pre(k, i_n, i_m, g, a)
                k(f"v_cvt_pk_bf16_f32 v16, v{a}, v{a+1}")
                k(f"v_cvt_pk_bf16_f32 v17, v{a+2}, v{a+3}")
                k(f"ds_write_b64 v3, v[16:17] offset:{i_m*32*272+i_n*64+g*16}")
    k("s_waitcnt lgkmcnt(0)")
    k("s_barrier")
    for j in range(8):
        k(f"ds_read_b128 v[{GV['ACC']+4*j}:{GV['ACC']+4*j+3}], v4 offset:{j*16*272}")
    for j in range(8):
        k(f"s_mov_b32 s23, {j*16*ldc}")
        k(f"s_waitcnt lgkmcnt({7-j})")
        k(f"buffer_store_dwordx4 v[{GV['ACC']+4*j}:{GV['ACC']+4*j+3}], v5, s[12:15], s23 offen")


def gen_qkv(k):
    def decode(k):
        k(f"""
        s_load_dwordx4 s[32:35], s[0:1], {A_CKV*8}
        s_load_dwordx4 s[36:39], s[0:1], {A_WUK*8}
        s_load_dwordx2 s[40:41], s[0:1], {D_WS*8}
        s_and_b32 s16, s2, 31             ; nt
        s_lshr_b32 s17, s2, 5
        s_and_b32 s17, s17, 15            ; mt
        s_lshr_b32 s18, s2, 9             ; sel
        s_waitcnt lgkmcnt(0)
        """)
        k(f"""
        s_add_u32 s42, s40, {WS_XLN}
        s_addc_u32 s43, s41, 0
        s_cmp_eq_u32 s18, 0
        s_cselect_b32 s44, s42, s32
        s_cselect_b32 s45, s43, s33
        s_cselect_b32 s46, s34, s36
        s_cselect_b32 s47, s35, s37
        s_cmp_eq_u32 s18, 2
        s_cselect_b32 s46, s38, s46
        s_cselect_b32 s47, s39, s47
        s_lshl_b32 s19, s17, 17           ; mt*128*1024
        s_add_u32 s44, s44, s19
        s_addc_u32 s45, s45, 0
        """)
        srd(k, 4, 44, 45, 128 * 1024)
        k(f"""
        s_lshl_b32 s19, s16, 8            ; n0*2
        s_add_u32 s46, s46, s19
        s_addc_u32 s47, s47, 0
        s_sub_u32 s20, {512*8192}, s19
        """)
        srd(k, 8, 46, 47, "s20")
        k(f"""
        s_mul_i32 s20, s18, 0x1000000
        s_add_u32 s20, s20, {WS_Q}
        s_lshl_b32 s21, s17, 20
        s_add_u32 s20, s20, s21
        s_add_u32 s20, s20, s19
        s_add_u32 s44, s40, s20
        s_addc_u32 s45, s41, 0
        """)
        srd(k, 12, 44, 45, 128 * 8192)

    gemm_kernel(k, "qkv_kernel", 1536, decode, 1024, 8192, 8, lambda k: epi_store_bf16(k, 8192))


def gen_attn(k):
    name = "attn_kernel"
    KA, VA, QF, S0, S1, PR, OA, FR = 16, 24, 32, 64, 96, 128, 144, 208
    VM, VL, VT0, VT1, VT2, VT3 = 240, 241, 243, 244, 245, 246
    kernel_begin(k, name)
    k(f"""
    s_cmp_ge_u32 s2, 512
    s_cbranch_scc1 L_{name}_done
    s_load_dwordx2 s[40:41], s[0:1], {D_WS*8}
    s_and_b32 s16, s2, 7
    s_lshr_b32 s17, s2, 3
    s_and_b32 s17, s17, 3
    s_lshl_b32 s17, s17, 3
    s_add_u32 s16, s16, s17            ; head
    s_lshr_b32 s17, s2, 5
    s_sub_u32 s18, 15, s17
    s_sub_u32 s19, s17, 8
    s_cmp_ge_u32 s17, 8
    s_cselect_b32 s17, s19, s18
    s_mov_b32 s62, 1
    s_lshl_b32 s20, s16, 8
    s_waitcnt lgkmcnt(0)
    s_add_u32 s42, s40, {WS_Q}
    s_addc_u32 s43, s41, 0
    s_add_u32 s42, s42, s20
    s_addc_u32 s43, s43, 0
    """)
    srd(k, 4, 42, 43, 2048 * 8192)
    k(f"""
    s_add_u32 s42, s40, {WS_K}
    s_addc_u32 s43, s41, 0
    s_add_u32 s42, s42, s20
    s_addc_u32 s43, s43, 0
    """)
    srd(k, 8, 42, 43, 2048 * 8192)
    k(f"""
    s_add_u32 s42, s40, {WS_V}
    s_addc_u32 s43, s41, 0
    s_add_u32 s42, s42, s20
    s_addc_u32 s43, s43, 0
    """)
    srd(k, 12, 42, 43, 2048 * 8192)
    k(f"""
    s_add_u32 s42, s40, {WS_CTX}
    s_addc_u32 s43, s41, 0
    s_add_u32 s42, s42, s20
    s_addc_u32 s43, s43, 0
    """)
    srd(k, 44, 42, 43, 2048 * 8192)
    k.label(f"L_{name}_blk")
    k("""
    s_lshl_b32 s18, s17, 7             ; q0
    s_add_u32 s19, s17, 1
    s_lshl_b32 s19, s19, 1             ; nkt
    """)
    k(f"""
    v_and_b32 v1, 63, v0                  ; lane
    v_lshrrev_b32 v2, 6, v0               ; wave
    v_and_b32 v3, 31, v1                  ; l&31
    v_lshrrev_b32 v4, 5, v1               ; h
    v_lshl_add_u32 v5, v2, 5, v3          ; 32w + (l&31)
    v_add_u32 v5, s18, v5
    v_lshlrev_b32 v6, 13, v5              ; query*8192
    v_lshl_add_u32 v6, v4, 4, v6
    """)
    for s in range(8):
        k(f"buffer_load_dwordx4 v[{QF+4*s}:{QF+4*s+3}], v6, s[4:7], 0 offen offset:{s*32}")
    k(f"""
    s_nop 1
    v_readfirstlane_b32 s50, v2
    v_lshrrev_b32 v7, 4, v1               ; lane>>4
    v_and_b32 v8, 15, v1
    v_lshlrev_b32 v9, 13, v7              ; row*8192
    v_lshl_add_u32 v12, v2, 2, v7
    v_and_b32 v12, 15, v12
    v_xor_b32 v12, v12, v8
    v_lshl_add_u32 v10, v12, 4, v9
    v_lshlrev_b32 v12, 2, v7
    v_xor_b32 v12, v12, v8
    v_lshl_add_u32 v11, v12, 4, v9
    s_lshl_b32 s53, s50, 10
    s_lshl_b32 s51, s50, 15
    """)
    k(f"""
    v_and_b32 v12, 15, v1
    v_lshlrev_b32 v13, 8, v3
    """)
    for s in range(8):
        k(f"""
        v_add_u32 v14, {2*s}, v4
        v_xor_b32 v14, v14, v12
        v_lshl_add_u32 v{KA+s}, v14, 4, v13
        """)
    k(f"""
    v_and_b32 v12, 15, v1                 ; c
    v_lshrrev_b32 v13, 2, v12             ; r
    v_and_b32 v12, 3, v12                 ; col4
    v_lshrrev_b32 v14, 4, v1              ; g
    v_lshrrev_b32 v15, 1, v14             ; h
    v_lshl_add_u32 v15, v15, 2, v13       ; 4h + r
    v_lshlrev_b32 v15, 8, v15             ; *256
    v_and_b32 v14, 1, v14
    v_lshlrev_b32 v14, 1, v14
    v_lshrrev_b32 v7, 1, v12
    v_add_u32 v14, v14, v7                ; 2*(g&1) + (col4>>1)
    v_and_b32 v12, 1, v12
    v_lshl_add_u32 v15, v12, 3, v15       ; + (col4&1)*8
    v_add_u32 v15, 16384, v15
    v_lshlrev_b32 v13, 2, v13             ; r<<2
    """)
    for t in range(4):
        k(f"""
        v_add_u32 v7, {4*t}, v14
        v_xor_b32 v7, v7, v13
        v_lshl_add_u32 v{VA+t}, v7, 4, v15
        """)
    k(f"v_mov_b32 v{VM}, 0xff800000")
    k(f"v_mov_b32 v{VL}, 0")
    for i in range(64):
        k(f"v_mov_b32 v{OA+i}, 0")
    k("s_mov_b32 s24, s51")
    k("s_mov_b32 s25, s51")

    def dma(which, b):
        base, sreg, voff, srdr = (0, 24, 10, 8) if which == "K" else (16384, 25, 11, 12)
        for j in range(4):
            k(f"s_add_u32 m0, s53, {b*32768+base+j*4096}")
            k(f"s_add_u32 s26, s{sreg}, {j*16*8192}")
            k(f"buffer_load_dwordx4 v{voff}, s[{srdr}:{srdr+3}], s26 offen lds")
        k(f"s_add_u32 s{sreg}, s{sreg}, {64*8192}")

    def qk_ops(kb, S):
        ops = []
        for a in range(2):
            for s_ in range(8):
                slot = FR + 4 * ((a * 8 + s_) % 8)
                rd = [f"ds_read_b128 v[{slot}:{slot+3}], v{KA+s_} offset:{kb*32768+a*8192}"]
                c = "0" if s_ == 0 else f"v[{S+16*a}:{S+16*a+15}]"
                mf = (f"v_mfma_f32_32x32x16_bf16 v[{S+16*a}:{S+16*a+15}], v[{slot}:{slot+3}], "
                      f"v[{QF+4*s_}:{QF+4*s_+3}], {c}")
                ops.append((rd, mf))
        return ops

    def pv_ops(vb):
        ops = []
        for t in range(4):
            for j in range(4):
                slot = FR + 4 * ((t * 4 + j) % 8)
                rd = [f"ds_read_b64_tr_b16 v[{slot+2*u}:{slot+2*u+1}], v{VA+t} offset:{vb*32768+j*4096+u*2048}"
                      for u in range(2)]
                mf = (f"v_mfma_f32_32x32x16_bf16 v[{OA+16*t}:{OA+16*t+15}], v[{slot}:{slot+3}], "
                      f"v[{PR+4*j}:{PR+4*j+3}], v[{OA+16*t}:{OA+16*t+15}]")
                ops.append((rd, mf))
        return ops

    def emit_merged(ops, valu, lead=0, ahead=7):
        q = []
        for l in valu[:lead]:
            k(l)
        rest = valu[lead:]
        n = len(ops)
        for i in range(min(ahead, n)):
            for r in ops[i][0]:
                k(r); q.append(i)
        per = [len(rest) * (i + 1) // n - len(rest) * i // n for i in range(n)]
        vi = 0
        for i in range(n):
            if i + ahead < n:
                for r in ops[i + ahead][0]:
                    k(r); q.append(i + ahead)
            pend = len([x for x in q if x > i])
            k(f"s_waitcnt lgkmcnt({pend})")
            q = [x for x in q if x > i]
            k(ops[i][1])
            for _ in range(per[i]):
                k(rest[vi]); vi += 1

    def round_valu(S):
        v = []
        for i in range(16):
            a_, b_ = S + 2 * i, S + 2 * i + 1
            v += [f"v_cvt_pk_bf16_f32 v{a_}, v{a_}, v{b_}",
                  f"v_and_b32 v{b_}, 0xffff0000, v{a_}",
                  f"v_lshlrev_b32 v{a_}, 16, v{a_}",
                  f"v_mul_f32 v{a_}, s30, v{a_}",
                  f"v_mul_f32 v{b_}, s30, v{b_}",
                  f"v_cvt_pk_bf16_f32 v{a_}, v{a_}, v{b_}",
                  f"v_and_b32 v{b_}, 0xffff0000, v{a_}",
                  f"v_lshlrev_b32 v{a_}, 16, v{a_}"]
        return v

    def mask(S, lab):
        k(f"""
        s_add_u32 s26, s21, 63
        s_cmp_le_u32 s26, s18
        s_cbranch_scc1 {lab}
        v_lshlrev_b32 v{VT1}, 2, v4
        v_add_u32 v{VT1}, s21, v{VT1}
        """)
        for a in range(2):
            for r in range(16):
                off = a * 32 + 8 * (r >> 2) + (r & 3)
                k(f"v_add_u32 v{VT2}, {off}, v{VT1}")
                k(f"v_cmp_gt_u32 vcc, v{VT2}, v5")
                k(f"v_cndmask_b32 v{S+16*a+r}, v{S+16*a+r}, v{VT3}, vcc")
        k.label(lab)

    def softmax_valu(S):
        v = [f"v_max3_f32 v{VT0}, v{S}, v{S+1}, v{S+2}"]
        for i in range(3, 31, 2):
            v.append(f"v_max3_f32 v{VT0}, v{VT0}, v{S+i}, v{S+i+1}")
        v += [f"v_max_f32 v{VT0}, v{VT0}, v{S+31}", f"v_mov_b32 v{VT1}, v{VT0}", "s_nop 1",
              f"v_permlane32_swap_b32 v{VT1}, v{VT0}", "s_nop 1",
              f"v_max3_f32 v{VT0}, v{VT0}, v{VT1}, v{VM}",
              f"v_sub_f32 v{VT1}, v{VM}, v{VT0}", f"v_mul_f32 v{VT1}, s31, v{VT1}",
              f"v_exp_f32 v{VT1}, v{VT1}", f"v_mov_b32 v{VM}, v{VT0}", f"v_mul_f32 v{VT2}, s31, v{VT0}"]
        for i in range(32):
            v.append(f"v_fma_f32 v{S+i}, v{S+i}, s31, -v{VT2}")
            v.append(f"v_exp_f32 v{S+i}, v{S+i}")
        v.append(f"v_mul_f32 v{VL}, v{VL}, v{VT1}")
        for i in range(16):
            v.append(f"v_add_f32 v{VL}, v{VL}, v{S+2*i}")
            v.append(f"v_add_f32 v{VL}, v{VL}, v{S+2*i+1}")
            v.append(f"v_cvt_pk_bf16_f32 v{PR+i}, v{S+2*i}, v{S+2*i+1}")
        for i in range(64):
            v.append(f"v_mul_f32 v{OA+i}, v{OA+i}, v{VT1}")
        return v

    k("s_mov_b32 s30, 0x3db504f3")
    k("s_mov_b32 s31, 0x3fb8aa3b")
    k("s_mov_b32 s36, s30"); k("s_mov_b32 s37, s30"); k("s_mov_b32 s38, s31"); k("s_mov_b32 s39, s31")
    k("v_mov_b32 v252, 0"); k("v_mov_b32 v253, 0")
    k(f"v_mov_b32 v{VT3}, 0xf149f2ca")
    dma("K", 0); dma("V", 0); dma("K", 1)
    k("s_waitcnt vmcnt(0)")
    k("s_barrier")
    emit_merged(qk_ops(0, S0), [])
    k("s_nop 7"); k("s_nop 7")
    for l in round_valu(S0):
        k(l)
    k("s_mov_b32 s21, 0")
    mask(S0, f"L_{name}_nm_p")
    k("s_mov_b32 s22, s19")
    k("s_barrier")
    k.label(f"L_{name}_loop")
    for b in range(2):
        Sc, Sn = (S0, S1) if b == 0 else (S1, S0)
        dma("K", b)
        dma("V", b ^ 1)
        import os
        AE = os.environ.get("AEXP", "")
        emit_merged(qk_ops(b ^ 1, Sn), softmax_valu(Sc) if "novalu" not in AE else [], lead=20)
        k("s_nop 1")
        emit_merged(pv_ops(b), round_valu(Sn) if "novalu" not in AE else [])
        k("s_add_u32 s21, s21, 64")
        mask(Sn, f"L_{name}_nm{b}")
        k("s_waitcnt vmcnt(0) lgkmcnt(0)" if "novm" not in AE else "s_waitcnt lgkmcnt(0)")
        k("s_barrier")
    k("s_sub_u32 s22, s22, 2")
    k("s_cmp_lg_u32 s22, 0")
    k(f"s_cbranch_scc1 L_{name}_loop")
    k("s_nop 7"); k("s_nop 7")
    k(f"""
    v_mov_b32 v{VT1}, v{VL}
    s_nop 1
    v_permlane32_swap_b32 v{VT1}, v{VL}
    s_nop 1
    v_add_f32 v{VL}, v{VL}, v{VT1}
    v_rcp_f32 v{VT0}, v{VL}
    s_nop 7
    s_nop 7
    v_fma_f32 v{VT1}, -v{VT0}, v{VL}, 1.0
    v_fmac_f32 v{VT0}, v{VT1}, v{VT0}
    v_lshlrev_b32 v6, 13, v5
    v_lshl_add_u32 v6, v4, 3, v6          ; query*8192 + h*8
    """)
    for t in range(4):
        for g in range(4):
            a = OA + 16 * t + 4 * g
            for i in range(4):
                k(f"v_mul_f32 v{a+i}, v{a+i}, v{VT0}")
            k(f"v_cvt_pk_bf16_f32 v{VT1}, v{a}, v{a+1}")
            k(f"v_cvt_pk_bf16_f32 v{VT2}, v{a+2}, v{a+3}")
            k(f"buffer_store_dwordx2 v[{VT1}:{VT2}], v6, s[44:47], 0 offen offset:{t*64+g*16}")
            k("s_nop 1")
    k("""
    s_mov_b32 s17, s61
    s_sub_u32 s62, s62, 1
    s_cmp_lg_u32 s62, 0
    """)
    k(f"s_cbranch_scc1 L_{name}_blk")
    k.label(f"L_{name}_done")
    kernel_end(k, name, 256)


def epi_store_f32(k, ldc):
    epi_lane_coords(k)
    k(f"""
    v_lshl_add_u32 v3, v7, 6, v1
    v_mul_u32_u24 v3, {ldc}, v3
    v_lshlrev_b32 v4, 4, v2               ; h*4*4 bytes
    v_lshl_add_u32 v4, v8, 8, v4          ; + wn*64*4
    v_add_u32 v3, v3, v4
    s_mov_b32 s23, {32*ldc}
    """)
    for i_n in range(2):
        for i_m in range(2):
            for g in range(4):
                a = GV['ACC'] + 16 * (2 * i_n + i_m) + 4 * g
                so = "s23" if i_m else "0"
                k(f"buffer_store_dwordx4 v[{a}:{a+3}], v3, s[12:15], {so} offen offset:{i_n*128+g*32}")


def gen_oproj(k):
    def decode(k):
        k(f"""
        s_load_dwordx2 s[32:33], s[0:1], {A_WO*8}
        s_load_dwordx2 s[40:41], s[0:1], {D_WS*8}
        s_and_b32 s16, s2, 3              ; nt
        s_lshr_b32 s17, s2, 2
        s_and_b32 s17, s17, 15            ; mt
        s_lshr_b32 s18, s2, 6             ; ks
        s_waitcnt lgkmcnt(0)
        s_add_u32 s44, s40, {WS_CTX}
        s_addc_u32 s45, s41, 0
        s_lshl_b32 s19, s17, 20           ; mt*128*8192
        s_lshl_b32 s20, s18, 11           ; ks*1024*2
        s_add_u32 s19, s19, s20
        s_add_u32 s44, s44, s19
        s_addc_u32 s45, s45, 0
        """)
        srd(k, 4, 44, 45, 128 * 8192 - 0)
        k(f"""
        s_lshl_b32 s19, s16, 8            ; n0*2
        s_lshl_b32 s20, s18, 20           ; ks*1024*1024
        s_add_u32 s19, s19, s20
        s_add_u32 s46, s32, s19
        s_addc_u32 s47, s33, 0
        s_sub_u32 s20, {4096*1024}, s19
        """)
        srd(k, 8, 46, 47, "s20")
        k(f"""
        s_lshl_b32 s20, s18, 22           ; ks*2048*2048
        s_add_u32 s20, s20, {WS_PART}
        s_lshl_b32 s21, s17, 18           ; mt*128*2048
        s_add_u32 s20, s20, s21
        s_lshl_b32 s21, s16, 9            ; n0*4
        s_add_u32 s20, s20, s21
        s_add_u32 s44, s40, s20
        s_addc_u32 s45, s41, 0
        """)
        srd(k, 12, 44, 45, 128 * 2048)

    gemm_kernel(k, "oproj_kernel", 256, decode, 8192, 1024, 16, lambda k: epi_store_f32(k, 2048), NS=4)


def load_bias(k, i_n, g):
    k(f"buffer_load_dwordx2 v[18:19], v15, s[56:59], 0 offen offset:{i_n*64+g*16}")


def gen_ffn1(k):
    def decode(k):
        k(f"""
        s_load_dwordx4 s[32:35], s[0:1], {B_W1*8}
        s_load_dwordx2 s[40:41], s[0:1], {D_WS*8}
        s_and_b32 s17, s2, 15             ; mt
        s_lshr_b32 s16, s2, 4             ; nt
        s_waitcnt lgkmcnt(0)
        s_add_u32 s44, s40, {WS_HLN}
        s_addc_u32 s45, s41, 0
        s_lshl_b32 s19, s17, 17           ; mt*128*1024
        s_add_u32 s44, s44, s19
        s_addc_u32 s45, s45, 0
        """)
        srd(k, 4, 44, 45, 128 * 1024)
        k(f"""
        s_lshl_b32 s19, s16, 8            ; n0*2
        s_add_u32 s46, s32, s19
        s_addc_u32 s47, s33, 0
        s_sub_u32 s20, {512*2752}, s19
        """)
        srd(k, 8, 46, 47, "s20")
        k(f"""
        s_add_u32 s46, s34, s19
        s_addc_u32 s47, s35, 0
        s_sub_u32 s20, {1376*2}, s19
        """)
        srd(k, 56, 46, 47, "s20")
        k(f"""
        s_mul_i32 s20, s17, {128*H1_PITCH*2}
        s_add_u32 s20, s20, {WS_H1}
        s_add_u32 s20, s20, s19
        s_add_u32 s44, s40, s20
        s_addc_u32 s45, s41, 0
        """)
        srd(k, 12, 44, 45, 128 * H1_PITCH * 2)

    def pre(k, i_n, i_m, g, a):
        load_bias(k, i_n, g)
        k("s_waitcnt vmcnt(0)")
        k(f"v_cvt_pk_bf16_f32 v20, v{a}, v{a+1}")
        k(f"v_cvt_pk_bf16_f32 v21, v{a+2}, v{a+3}")
        for i in range(4):
            src = 20 + (i >> 1)
            bsrc = 18 + (i >> 1)
            if i & 1:
                k(f"v_and_b32 v{22+i}, 0xffff0000, v{src}")
                k(f"v_and_b32 v{26+i}, 0xffff0000, v{bsrc}")
            else:
                k(f"v_lshlrev_b32 v{22+i}, 16, v{src}")
                k(f"v_lshlrev_b32 v{26+i}, 16, v{bsrc}")
        for i in range(4):
            k(f"v_add_f32 v{22+i}, v{22+i}, v{26+i}")
        k("v_cvt_pk_bf16_f32 v20, v22, v23")
        k("v_cvt_pk_bf16_f32 v21, v24, v25")
        for i in range(4):
            src = 20 + (i >> 1)
            if i & 1:
                k(f"v_and_b32 v{22+i}, 0xffff0000, v{src}")
            else:
                k(f"v_lshlrev_b32 v{22+i}, 16, v{src}")
        for i in range(4):
            k(f"v_mul_f32 v{26+i}, v{22+i}, v{22+i}")
            k(f"v_fma_f32 v{26+i}, v{26+i}, s36, v31")
            k(f"v_mul_f32 v{26+i}, v{26+i}, v{22+i}")
            k(f"v_exp_f32 v{26+i}, v{26+i}")
        k("s_nop 0")
        for i in range(4):
            k(f"v_add_f32 v{26+i}, 1.0, v{26+i}")
            k(f"v_rcp_f32 v{26+i}, v{26+i}")
        k("s_nop 0")
        for i in range(4):
            k(f"v_mul_f32 v{26+i}, v{26+i}, v{22+i}")
            k(f"v_sub_f32 v{a+i}, v{22+i}, v{26+i}")

    def epi(k):
        import math
        c0 = 2.0 * math.log2(math.e) * math.sqrt(2.0 / math.pi)
        c1 = c0 * 0.044715
        import struct
        f = lambda x: struct.unpack("<I", struct.pack("<f", x))[0]
        k(f"s_mov_b32 s36, {f(c1):#x}")
        k(f"v_mov_b32 v31, {f(c0):#x}")
        epi_lane_coords(k)
        k("""
        v_lshlrev_b32 v15, 3, v2
        v_lshl_add_u32 v15, v8, 7, v15
        """)
        epi_store_bf16(k, H1_PITCH * 2, pre)

    gemm_kernel(k, "ffn1_kernel", 176, decode, 1024, 2752, 8, epi, NS=4)


def gen_ffn2(k):
    def decode(k):
        k(f"""
        s_load_dwordx4 s[32:35], s[0:1], {B_W2*8}
        s_load_dwordx2 s[40:41], s[0:1], {D_WS*8}
        s_load_dwordx2 s[48:49], s[0:1], {D_OUT*8}
        s_and_b32 s16, s2, 3              ; nt
        s_lshr_b32 s17, s2, 2             ; mt
        s_waitcnt lgkmcnt(0)
        s_mul_i32 s19, s17, {128*H1_PITCH*2}
        s_add_u32 s19, s19, {WS_H1}
        s_add_u32 s44, s40, s19
        s_addc_u32 s45, s41, 0
        """)
        srd(k, 4, 44, 45, 128 * H1_PITCH * 2)
        k(f"""
        s_lshl_b32 s19, s16, 8            ; n0*2
        s_add_u32 s46, s32, s19
        s_addc_u32 s47, s33, 0
        s_sub_u32 s20, {1376*1024}, s19
        """)
        srd(k, 8, 46, 47, "s20")
        k(f"""
        s_add_u32 s46, s34, s19
        s_addc_u32 s47, s35, 0
        """)
        srd(k, 56, 46, 47, 256)
        k(f"""
        s_lshl_b32 s20, s17, 17
        s_add_u32 s20, s20, s19
        s_add_u32 s44, s48, s20
        s_addc_u32 s45, s49, 0
        """)
        srd(k, 12, 44, 45, 128 * 1024)
        k(f"""
        s_add_u32 s20, s20, {WS_H}
        s_add_u32 s44, s40, s20
        s_addc_u32 s45, s41, 0
        """)
        srd(k, 64, 44, 45, 128 * 1024)

    def pre(k, i_n, i_m, g, a):
        load_bias(k, i_n, g)
        so = "s60" if i_m else "0"
        k(f"buffer_load_dwordx2 v[30:31], v14, s[64:67], {so} offen offset:{i_n*64+g*16}")
        k("s_waitcnt vmcnt(0)")
        k(f"v_cvt_pk_bf16_f32 v20, v{a}, v{a+1}")
        k(f"v_cvt_pk_bf16_f32 v21, v{a+2}, v{a+3}")
        for i in range(4):
            src = 20 + (i >> 1)
            bsrc = 18 + (i >> 1)
            if i & 1:
                k(f"v_and_b32 v{22+i}, 0xffff0000, v{src}")
                k(f"v_and_b32 v{26+i}, 0xffff0000, v{bsrc}")
            else:
                k(f"v_lshlrev_b32 v{22+i}, 16, v{src}")
                k(f"v_lshlrev_b32 v{26+i}, 16, v{bsrc}")
        for i in range(4):
            k(f"v_add_f32 v{22+i}, v{22+i}, v{26+i}")
        k("v_cvt_pk_bf16_f32 v20, v22, v23")
        k("v_cvt_pk_bf16_f32 v21, v24, v25")
        for i in range(4):
            src = 20 + (i >> 1)
            hsrc = 30 + (i >> 1)
            if i & 1:
                k(f"v_and_b32 v{22+i}, 0xffff0000, v{src}")
                k(f"v_and_b32 v{26+i}, 0xffff0000, v{hsrc}")
            else:
                k(f"v_lshlrev_b32 v{22+i}, 16, v{src}")
                k(f"v_lshlrev_b32 v{26+i}, 16, v{hsrc}")
        for i in range(4):
            k(f"v_add_f32 v{a+i}, v{22+i}, v{26+i}")

    def epi(k):
        epi_lane_coords(k)
        k("""
        v_lshlrev_b32 v15, 3, v2
        v_lshl_add_u32 v15, v8, 7, v15
        v_lshl_add_u32 v14, v7, 6, v1
        v_lshl_add_u32 v14, v14, 10, v15
        s_mov_b32 s60, 32768
        """)
        epi_store_bf16(k, 1024, pre)

    gemm_kernel(k, "ffn2_kernel", 64, decode, H1_PITCH * 2, 1024, 24, epi, NS=4)


def main():
    k = Asm()
    hdr = open(OUT + ".ref").read().split("; Override launch")[0]
    k.raw(hdr.rstrip("\n"))
    k.raw("; @launch kernel=ln1_kernel grid=(512,1,1) block=(256,1,1) lds=0")
    k.raw("; @launch kernel=qkv_kernel grid=(1536,1,1) block=(256,1,1) lds=65536")
    k.raw("; @launch kernel=attn_kernel grid=(512,1,1) block=(256,1,1) lds=65536")
    k.raw("; @launch kernel=oproj_kernel grid=(256,1,1) block=(256,1,1) lds=131072")
    k.raw("; @launch kernel=ln2_kernel grid=(512,1,1) block=(256,1,1) lds=0")
    k.raw("; @launch kernel=ffn1_kernel grid=(176,1,1) block=(256,1,1) lds=131072")
    k.raw("; @launch kernel=ffn2_kernel grid=(64,1,1) block=(256,1,1) lds=131072")
    k.raw('.amdgcn_target "amdgcn-amd-amdhsa--gfx950"')
    ln_kernel(k, "ln1_kernel", 1)
    gen_qkv(k)
    gen_attn(k)
    gen_oproj(k)
    ln_kernel(k, "ln2_kernel", 2)
    gen_ffn1(k)
    gen_ffn2(k)
    open(OUT, "w").write(k.text())


if __name__ == "__main__":
    main()
```
